```python
import torch

def _softmax(x, axis=-1):
    return torch.softmax(x, dim=axis)
def _gelu(x):
    return torch.nn.functional.gelu(x, approximate="tanh")
def _silu(x):
    return torch.nn.functional.silu(x)
def _sigmoid(x):
    return torch.sigmoid(x)
def _layernorm(x, axis=-1, eps=1e-5):
    m = x.mean(dim=axis, keepdim=True)
    v = x.var(dim=axis, keepdim=True, unbiased=False)
    return (x - m) / torch.sqrt(v + eps)
def _scatter_add(tgt, idx, src, axis=0):
    return tgt.clone().index_add_(axis, idx, src)
def _segment_sum(src, seg, n):
    out = torch.zeros((n,) + src.shape[1:], dtype=src.dtype)
    return out.index_add_(0, seg, src)
def _pad(x, pw):
    flat = tuple(v for pair in reversed(pw) for v in pair)
    return torch.nn.functional.pad(x, flat)

kernel_name = 'standalone__deep_cross_pnn__recsys'

def setup_inputs():

    _w = (lambda a: (lambda t: t.to(torch.bfloat16) if t.is_floating_point() else t)(torch.as_tensor(a)))
    B, F, D, V = 4096, 100, 32, min(1000000, 100000)
    H = 4 * D
    return {
        "idx": _w((lambda lo, hi, *s: torch.randint(lo, hi, s))(0, V, B, F).to(torch.int64)),
        "table": _w((lambda *s: torch.randn(*s, dtype=torch.bfloat16) * 1.6)(V, D) * (D ** -0.5)),
        "w_p": _w((lambda *s: torch.randn(*s, dtype=torch.bfloat16) * 0.05)(F * F) * ((F * F) ** -0.5)),
        "w1": _w((lambda *s: torch.randn(*s, dtype=torch.bfloat16) * 1.6)(F * D, H) * ((F * D) ** -0.5)),
        "b1": _w((lambda *s: torch.randn(*s, dtype=torch.bfloat16) * 1.6)(H) * 0.01),
        "w2": _w((lambda *s: torch.randn(*s, dtype=torch.bfloat16) * 0.05)(H) * (H ** -0.5)),
        "b2": _w((lambda *s: torch.randn(*s, dtype=torch.bfloat16) * 0.05)(1) * 0.01),
    }

def reference(idx, table, w_p, w1, b1, w2, b2):
    emb = table[idx]
    B = emb.shape[0]; F = emb.shape[1]; D = emb.shape[2]
    ip = torch.einsum('bid,bjd->bij', emb, emb)
    ip = ip.reshape(B, F * F)
    logit_p = ip @ w_p
    z = emb.reshape(B, F * D)
    h = _gelu(z @ w1 + b1)
    logit_d = h @ w2 + b2
    return logit_p + logit_d
```

```python
import sys
PROFILE = int(sys.argv[2]) if len(sys.argv) > 2 else 0
OPT = dict(kv.split('=') for kv in sys.argv[3:])
def opt(k, d): return int(OPT.get(k, d))
L = []
def e(s=''): L.append(s)
ES = 1056
EBASE = 0
WBASE = 105600
RBASE = WBASE + 22528
RS = 8448
FBASE = RBASE + 4 * RS
LDS = FBASE + 64
NST = 16
stamp_n = [0]
def stamp(k, rt=False):
    if not PROFILE: return
    e(f'  s_mem{"real" if rt else ""}time s[{40+2*k}:{41+2*k}]')
    e('  s_waitcnt lgkmcnt(0)')
def stamp_store():
    if not PROFILE: return
    e('  s_load_dwordx2 s[36:37], s[0:1], 72')
    e(f'  s_lshl_b32 s38, s2, 3')
    e(f'  s_add_u32 s38, s38, s33')
    e(f'  s_mul_i32 s38, s38, {NST*8}')
    e('  s_waitcnt lgkmcnt(0)')
    e('  s_add_u32 s36, s36, s38')
    e('  s_addc_u32 s37, s37, 0')
    e('  v_mov_b32 v2, 0')
    e('  s_mov_b64 exec, 1')
    for k in range(NST):
        e(f'  v_mov_b32 v4, s{40+2*k}')
        e(f'  v_mov_b32 v5, s{41+2*k}')
        e(f'  global_store_dwordx2 v2, v[4:5], s[36:37] offset:{k*8}')
        e('  s_nop 1')
    e('  s_waitcnt vmcnt(0)')

K = 'standalone__deep_cross_pnn__recsys_kernel'
hdr = open('standalone__deep_cross_pnn__recsys.s.ref').read().split('\n')
for l in hdr:
    if l.startswith('; @launch'):
        e(f'; @launch grid=(256,1,1) block=(512,1,1) lds={LDS}')
    elif l.startswith(';'):
        e(l)
    else:
        break
e('.amdgcn_target "amdgcn-amd-amdhsa--gfx950"')
e('.text')
e(f'.globl {K}')
e('.p2align 8')
e(f'.type {K},@function')
e(f'{K}:')
e('  s_cmp_ge_u32 s2, 256')
e('  s_cbranch_scc1 L_end')
if PROFILE:
    for k in range(NST):
        e(f'  s_mov_b64 s[{40+2*k}:{41+2*k}], 0')
stamp(0, rt=True)
stamp(1)
e('  s_load_dwordx16 s[72:87], s[0:1], 0')
e('  v_lshrrev_b32 v1, 6, v0')
e('  v_and_b32 v0, 63, v0')
e('  v_readfirstlane_b32 s33, v1')
e('  s_waitcnt lgkmcnt(0)')
def srd(d, p, n):
    e(f'  s_mov_b32 s{d}, s{p}')
    e(f'  s_and_b32 s{d+1}, s{p+1}, 0xffff')
    e(f'  s_mov_b32 s{d+2}, {n}')
    e(f'  s_mov_b32 s{d+3}, 0x20000')
e('  s_cmp_ge_u32 s33, 4')
e('  s_cbranch_scc1 L_pnn')
NS = 5
ACC = 0+4
SLAB = 36
TMP = 196
AFR = 212
VW1 = 1
VA = 2
VP = 3
srd(16, 78, 819200)
e('  v_lshrrev_b32 v2, 4, v0')
e('  v_and_b32 v3, 15, v0')
e('  v_lshlrev_b32 v1, 11, v2')
e('  v_lshl_add_u32 v1, v3, 4, v1')
e(f'  s_mul_i32 s20, s33, {25*8192}')
def slab_loads(i):
    for j in range(8):
        r = SLAB + i*32 + j*4
        e(f'  buffer_load_dwordx4 v[{r}:{r+3}], v{VW1}, s[16:19], s20 offen offset:{j*256}')
    e('  s_add_u32 s20, s20, 8192')
for i in range(NS):
    slab_loads(i)
stamp(2)
e('  v_lshrrev_b32 v220, 3, v3')
e('  v_lshlrev_b32 v220, 1, v220')
e('  v_xor_b32 v220, v220, v2')
e('  v_lshl_add_u32 v220, v3, 2, v220')
e('  v_lshlrev_b32 v220, 4, v220')
e(f'  s_mul_i32 s21, s33, {25*ES}')
e(f'  s_add_u32 s21, s21, {EBASE}')
e(f'  v_add_u32 v{VA}, s21, v220')
e(f'  s_mul_i32 s22, s33, {RS}')
e(f'  s_add_u32 s22, s22, {RBASE}')
e('  v_mul_u32_u24 v221, 528, v3')
e('  v_lshrrev_b32 v222, 4, v0')
e('  v_lshl_add_u32 v221, v222, 4, v221')
e('  v_add_u32 v221, s22, v221')
e('  s_lshl_b32 s23, s33, 2')
e(f'  s_add_u32 s23, s23, {FBASE}')
e(f'  v_mov_b32 v{VP}, s23')
for r in range(32):
    e(f'  v_mov_b32 v{ACC+r}, 0')
e('  s_mov_b32 s24, 0x05040100')
e('  s_mov_b32 s25, 0x07060302')
e('  s_mov_b32 s26, 5')
e('  s_barrier')
stamp(3)
e('L_mlp_loop:')
e('L_mlp_poll:')
e(f'  ds_read_b32 v223, v{VP}')
e('  s_waitcnt lgkmcnt(0)')
e('  v_readfirstlane_b32 s27, v223')
e('  s_cmp_ge_u32 s27, s26')
e('  s_cbranch_scc1 L_mlp_go')
e('  s_sleep 1')
e('  s_branch L_mlp_poll')
e('L_mlp_go:')
e('  s_cmp_eq_u32 s26, 25')
e('  s_cselect_b32 s18, 0, s18')
e(f'  ds_read_b128 v[{AFR}:{AFR+3}], v{VA}')
for st in range(NS):
    a = AFR + (st & 1) * 4
    an = AFR + ((st + 1) & 1) * 4
    if st + 1 < NS:
        e(f'  ds_read_b128 v[{an}:{an+3}], v{VA} offset:{(st+1)*ES}')
    e(f'  s_waitcnt vmcnt({8*(NS-1)})')
    sl = SLAB + st*32
    def perms(cp):
        tb = TMP + (cp & 1) * 8
        for h in range(2):
            for m in range(4):
                lo = sl + (2*m)*4 + cp
                hi = sl + (2*m+1)*4 + cp
                e(f'  v_perm_b32 v{tb+h*4+m}, v{hi}, v{lo}, s{24+h}')
    def mf(cp, h):
        tb = TMP + (cp & 1) * 8
        t = 2*cp + h
        e(f'  v_mfma_f32_16x16x32_bf16 v[{ACC+4*t}:{ACC+4*t+3}], v[{a}:{a+3}], v[{tb+h*4}:{tb+h*4+3}], v[{ACC+4*t}:{ACC+4*t+3}]')
    perms(0)
    e(f'  s_waitcnt lgkmcnt({1 if st+1 < NS else 0})')
    perms(1); mf(0,0); mf(0,1)
    perms(2); mf(1,0); mf(1,1)
    perms(3); mf(2,0); mf(2,1)
    for j in range(8):
        r = sl + j*4
        e(f'  buffer_load_dwordx4 v[{r}:{r+3}], v{VW1}, s[16:19], s20 offen offset:{j*256}')
        if j == 1: mf(3,0)
        if j == 3: mf(3,1)
    e('  s_add_u32 s20, s20, 8192')
e(f'  v_add_u32 v{VA}, {NS*ES}, v{VA}')
e('  s_add_u32 s26, s26, 5')
e('  s_cmp_le_u32 s26, 25')
e('  s_cbranch_scc1 L_mlp_loop')
stamp(4)
e('  s_nop 7')
for t in range(8):
    e(f'  ds_write_b128 v221, v[{ACC+4*t}:{ACC+4*t+3}] offset:{t*64}')
e('  s_waitcnt lgkmcnt(0)')
e('  s_barrier')
stamp(5)
stamp(NST-1, rt=True)
stamp_store()
e('  s_endpgm')
e('L_pnn:')
e('  s_sub_u32 s34, s33, 4')
srd(4, 72, 4096*400)
srd(8, 74, 6400000)
srd(12, 76, 20000)
srd(20, 80, 256)
srd(24, 82, 256)
srd(28, 86, 8192)
e('  s_load_dword s35, s[84:85], 0')
IDX = 200
e('  v_lshrrev_b32 v1, 2, v0')
e('  v_and_b32 v2, 3, v0')
e('  s_lshl_b32 s36, s2, 4')
e('  v_add_u32 v3, s36, v1')
e('  v_mul_u32_u24 v3, 400, v3')
e('  v_lshl_add_u32 v3, v2, 5, v3')
e('  s_mul_i32 s37, s34, 100')
e(f'  buffer_load_dwordx4 v[{IDX}:{IDX+3}], v3, s[4:7], s37 offen')
e(f'  buffer_load_dwordx4 v[{IDX+4}:{IDX+7}], v3, s[4:7], s37 offen offset:16')
e('  v_lshlrev_b32 v4, 4, v0')
e('  s_lshl_b32 s38, s34, 10')
e(f'  s_add_u32 s39, s38, {WBASE}')
for k in range(6):
    e(f'  s_mov_b32 m0, s39')
    e(f'  s_add_u32 s39, s39, 4096')
    e(f'  buffer_load_dwordx4 v4, s[12:15], s38 offen lds')
    e(f'  s_add_u32 s38, s38, 4096')
B1R = 240
e('  v_lshlrev_b32 v5, 1, v0')
e(f'  buffer_load_ushort v{B1R}, v5, s[20:23], 0 offen')
e(f'  buffer_load_ushort v{B1R+1}, v5, s[20:23], 0 offen offset:128')
e(f'  buffer_load_ushort v{B1R+2}, v5, s[24:27], 0 offen')
e(f'  buffer_load_ushort v{B1R+3}, v5, s[24:27], 0 offen offset:128')
e('  s_lshl_b32 s23, s34, 2')
e(f'  s_add_u32 s23, s23, {FBASE}')
e('  v_mov_b32 v244, s23')
e('  v_mov_b32 v6, 0')
e('  ds_write_b32 v244, v6')
e('  v_lshrrev_b32 v6, 5, v0')
e('  v_lshlrev_b32 v6, 1, v6')
e('  v_xor_b32 v6, v6, v2')
e('  v_lshlrev_b32 v6, 4, v6')
e('  v_and_b32 v7, 15, v0')
e('  v_lshrrev_b32 v8, 4, v0')
e('  v_lshlrev_b32 v9, 3, v8')
e('  v_sub_u32 v9, v7, v9')
e('  v_and_b32 v10, 1, v9')
e('  v_lshlrev_b32 v10, 4, v10')
e('  s_mov_b32 s39, 0x3f80')
e('  v_lshlrev_b32 v10, v10, s39')
e('  v_ashrrev_i32 v11, 1, v9')
e('  v_add_u32 v12, 8, v11')
e('  v_cmp_gt_u32 s[36:37], 4, v7')
for m in range(4):
    e(f'  v_cmp_eq_u32 vcc, {m}, v11')
    e('  s_nop 1')
    e(f'  v_cndmask_b32 v{224+m}, 0, v10, vcc')
    e(f'  v_cmp_eq_u32 vcc, {m}, v12')
    e('  s_nop 1')
    e(f'  v_cndmask_b32 v{228+m}, 0, v10, vcc')
for m in range(4):
    e(f'  v_cndmask_b32 v{232+m}, 0, v{224+m}, s[36:37]')
e('  v_mul_u32_u24 v13, 200, v7')
e('  v_lshl_add_u32 v13, v8, 4, v13')
e(f'  v_add_u32 v13, {WBASE}, v13')
stamp(2)
e('  s_waitcnt vmcnt(10)')
stamp(3)
for r in range(8):
    e(f'  v_lshlrev_b32 v{IDX+r}, 6, v{IDX+r}')
e(f'  s_mul_i32 s39, s34, {25*ES}')
e(f'  s_add_u32 s39, s39, {EBASE}')
e('  s_mov_b32 m0, s39')
for r in range(25):
    k = r >> 3
    e(f'  v_add_u32_dpp v14, v{IDX+(r&7)}, v6 quad_perm:[{k},{k},{k},{k}] row_mask:0xf bank_mask:0xf')
    e(f'  buffer_load_dwordx4 v14, s[8:11], 0 offen lds')
    if r < 24:
        e(f'  s_add_u32 m0, m0, {ES}')
stamp(4)
e('  s_waitcnt vmcnt(25) lgkmcnt(0)')
e('  s_barrier')
stamp(5)
e('  v_mov_b32 v236, v0')
e('  v_mov_b32 v237, v13')
FR = 112
for X in range(7):
    for kb in range(4):
        r = FR + (X*4+kb)*4
        off = X*3200 + kb*64
        e(f'  ds_read_b64 v[{r}:{r+1}], v237 offset:{off}')
        e(f'  ds_read_b64 v[{r+2}:{r+3}], v237 offset:{off+8}')
    if X >= 1 and X < 6:
        e('  s_waitcnt lgkmcnt(7)')
e('  s_waitcnt lgkmcnt(0)')
tiles = [(I, J) for J in range(7) for I in range(J+1)]
def F(X, kb): r = FR + (X*4+kb)*4; return f'v[{r}:{r+3}]'
def SEL(X):
    if X == 6: return 'v[232:235]'
    return 'v[224:227]' if X % 2 == 0 else 'v[228:231]'
for n, (I, J) in enumerate(tiles):
    d = f'v[{n*4}:{n*4+3}]'
    e(f'  v_mfma_f32_16x16x32_bf16 {d}, {F(I, J>>1)}, {SEL(J)}, 0')
    if I != J:
        e(f'  v_mfma_f32_16x16x32_bf16 {d}, {SEL(I)}, {F(J, I>>1)}, {d}')
stamp(6)
for g in range(1, 6):
    e(f'  s_waitcnt vmcnt({25-5*g})')
    e(f'  v_mov_b32 v238, {5*g}')
    e('  ds_write_b32 v244, v238')
stamp(7)
EF = 112
DB = 140
AC = 152
RES = 156
e('  v_and_b32 v200, 15, v236')
e('  v_lshrrev_b32 v201, 4, v236')
e('  s_lshr_b32 s36, s34, 1')
e('  s_lshl_b32 s36, s36, 1')
e('  v_xor_b32 v201, s36, v201')
e('  s_lshl_b32 s37, s34, 4')
e('  v_add_u32 v201, s37, v201')
e('  v_lshlrev_b32 v201, 4, v201')
e(f'  v_add_u32 v201, {EBASE}, v201')
e(f'  v_mov_b32 v202, {ES}')
e('  v_mad_u32_u24 v203, v200, v202, v201')
e(f'  v_add_u32 v204, {4*16*ES}, v203')
e('  v_and_b32 v200, 3, v200')
e('  v_add_u32 v200, 96, v200')
e('  v_mad_u32_u24 v205, v200, v202, v201')
e(f'  v_mov_b32 v206, {FBASE}')
e('L_pnn_poll:')
e('  ds_read_b128 v[208:211], v206')
e('  s_waitcnt lgkmcnt(0)')
e('  v_min_u32 v208, v208, v209')
e('  v_min3_u32 v208, v208, v210, v211')
e('  s_nop 0')
e('  v_readfirstlane_b32 s27, v208')
e('  s_cmp_ge_u32 s27, 25')
e('  s_cbranch_scc1 L_pnn_go')
e('  s_sleep 1')
e('  s_branch L_pnn_poll')
e('L_pnn_go:')
stamp(8)
e('  s_mov_b32 s26, 0')
e('L_pnn_loop:')
for I in range(4):
    e(f'  ds_read_b128 v[{EF+4*I}:{EF+4*I+3}], v203 offset:{I*16*ES}')
for I in range(4, 6):
    e(f'  ds_read_b128 v[{EF+4*I}:{EF+4*I+3}], v204 offset:{(I-4)*16*ES}')
e(f'  ds_read_b128 v[{EF+24}:{EF+27}], v205')
for r in range(4):
    e(f'  v_mov_b32 v{AC+r}, 0')
def fm(n):
    d = DB + (n % 3) * 4
    for r in range(4):
        e(f'  v_fmac_f32 v{AC+r}, v{d+r}, v{n*4+r}')
lastJ = -1
for n, (I, J) in enumerate(tiles):
    if J != lastJ:
        e(f'  s_waitcnt lgkmcnt({6-J})')
        lastJ = J
    d = DB + (n % 3) * 4
    e(f'  v_mfma_f32_16x16x32_bf16 v[{d}:{d+3}], v[{EF+4*I}:{EF+4*I+3}], v[{EF+4*J}:{EF+4*J+3}], 0')
    if n >= 2:
        if n == 2: e('  s_nop 5')
        fm(n-2)
e('  s_nop 3')
fm(26)
e('  s_nop 3')
fm(27)
e(f'  v_add_f32 v{AC}, v{AC}, v{AC+1}')
e(f'  v_add_f32 v{AC+2}, v{AC+2}, v{AC+3}')
e(f'  v_mov_b32 v{RES}, v{RES+1}')
e(f'  v_mov_b32 v{RES+1}, v{RES+2}')
e(f'  v_mov_b32 v{RES+2}, v{RES+3}')
e(f'  v_add_f32 v{RES+3}, v{AC}, v{AC+2}')
e('  v_add_u32 v203, 64, v203')
e('  v_add_u32 v204, 64, v204')
e('  v_add_u32 v205, 64, v205')
e('  s_add_u32 s26, s26, 1')
e('  s_cmp_lt_u32 s26, 4')
e('  s_cbranch_scc1 L_pnn_loop')
stamp(9)
e('  v_lshrrev_b32 v200, 3, v236')
e('  v_and_b32 v201, 7, v236')
e('  v_mul_u32_u24 v200, 528, v200')
e('  v_lshl_add_u32 v200, v201, 6, v200')
e('  s_lshl_b32 s36, s34, 4')
e(f'  s_add_u32 s36, s36, {RBASE}')
e('  v_add_u32 v200, s36, v200')
for r in range(4):
    e(f'  v_lshlrev_b32 v{B1R+r}, 16, v{B1R+r}')
e('  s_mov_b32 s36, 0xc0135761')
e('  s_mov_b32 s37, 0xbdd2d3e8')
e('  s_barrier')
stamp(10)
P = 0
for half in range(2):
    for w in range(4):
        r = P + half*16 + w*4
        e(f'  ds_read_b128 v[{r}:{r+3}], v200 offset:{w*RS + half*4224}')
for half in range(2):
    e(f'  s_waitcnt lgkmcnt({4 if half == 0 else 0})')
    b = P + half*16
    for r in range(4):
        e(f'  v_add_f32 v{b+r}, v{b+r}, v{b+4+r}')
        e(f'  v_add_f32 v{b+8+r}, v{b+8+r}, v{b+12+r}')
    for r in range(4):
        e(f'  v_add_f32 v{b+r}, v{b+r}, v{b+8+r}')
    for r in range(4):
        e(f'  v_add_f32 v{b+r}, v{b+r}, v{B1R+half}')
    for r in range(4):
        e(f'  v_mul_f32 v{b+4+r}, v{b+r}, v{b+r}')
    e('  v_mov_b32 v40, s36')
    for r in range(4):
        e(f'  v_fma_f32 v{b+4+r}, v{b+4+r}, s37, v40')
    for r in range(4):
        e(f'  v_mul_f32 v{b+4+r}, v{b+4+r}, v{b+r}')
    for r in range(4):
        e(f'  v_exp_f32 v{b+4+r}, v{b+4+r}')
    for r in range(4):
        e(f'  v_add_f32 v{b+4+r}, 1.0, v{b+4+r}')
    for r in range(4):
        e(f'  v_rcp_f32 v{b+4+r}, v{b+4+r}')
    for r in range(4):
        e(f'  v_mul_f32 v{b+4+r}, v{b+4+r}, v{b+r}')
    for r in range(4):
        e(f'  v_fmac_f32 v{RES+r}, v{b+4+r}, v{B1R+2+half}')
for sh in ['row_shr:1', 'row_shr:2', 'row_shr:4', 'row_shr:8']:
    for r in range(4):
        e(f'  v_add_f32_dpp v{RES+r}, v{RES+r}, v{RES+r} {sh} row_mask:0xf bank_mask:0xf')
for r in range(4):
    e(f'  v_add_f32_dpp v{RES+r}, v{RES+r}, v{RES+r} row_bcast:15 row_mask:0xa bank_mask:0xf')
for r in range(4):
    e(f'  v_add_f32_dpp v{RES+r}, v{RES+r}, v{RES+r} row_bcast:31 row_mask:0xc bank_mask:0xf')
e('  s_lshl_b32 s35, s35, 16')
for r in range(4):
    e(f'  v_add_f32 v{RES+r}, s35, v{RES+r}')
e(f'  v_cvt_pk_bf16_f32 v40, v{RES}, v{RES+1}')
e(f'  v_cvt_pk_bf16_f32 v41, v{RES+2}, v{RES+3}')
e('  s_lshl_b32 s36, s2, 5')
e('  s_lshl_b32 s37, s34, 3')
e('  s_add_u32 s36, s36, s37')
e('  v_mov_b32 v42, s36')
e('  s_mov_b64 exec, 0x8000000000000000' if 0 else '  s_mov_b32 exec_lo, 0')
e('  s_mov_b32 exec_hi, 0x80000000')
e('  buffer_store_dwordx2 v[40:41], v42, s[28:31], 0 offen')
stamp(11)
stamp(NST-1, rt=True)
stamp_store()
e('L_end:')
e('  s_endpgm')
e('.section .rodata,"a"')
e('.p2align 6')
e(f'.amdhsa_kernel {K}')
e('  .amdhsa_next_free_vgpr 256')
e('  .amdhsa_next_free_sgpr 102')
e('  .amdhsa_accum_offset 256')
e('  .amdhsa_group_segment_fixed_size 0')
e('  .amdhsa_kernarg_size 80')
e('  .amdhsa_user_sgpr_count 2')
e('  .amdhsa_user_sgpr_kernarg_segment_ptr 1')
e('  .amdhsa_system_sgpr_workgroup_id_x 1')
e('.end_amdhsa_kernel')
open(sys.argv[1], 'w').write('\n'.join(L) + '\n')
print('LDS', LDS)
```

```python
import sys
PROFILE = int(sys.argv[2]) if len(sys.argv) > 2 else 0
OPT = dict(kv.split('=') for kv in sys.argv[3:])
def opt(k, d): return int(OPT.get(k, d))
L = []
def e(s=''): L.append(s)
ES = 1056
EBASE = 0
WBASE = 105600
RBASE = WBASE + 22528
RS = 8448
FBASE = RBASE + 4 * RS
LDS = FBASE + 64
NST = 16
stamp_n = [0]
def stamp(k, rt=False):
    if not PROFILE: return
    e(f'  s_mem{"real" if rt else ""}time s[{40+2*k}:{41+2*k}]')
    e('  s_waitcnt lgkmcnt(0)')
def stamp_store():
    if not PROFILE: return
    e('  s_load_dwordx2 s[36:37], s[0:1], 72')
    e(f'  s_lshl_b32 s38, s2, 3')
    e(f'  s_add_u32 s38, s38, s33')
    e(f'  s_mul_i32 s38, s38, {NST*8}')
    e('  s_waitcnt lgkmcnt(0)')
    e('  s_add_u32 s36, s36, s38')
    e('  s_addc_u32 s37, s37, 0')
    e('  s_mov_b64 exec, 1')
    e('  v_mov_b32 v2, 0')
    for k in range(NST):
        e(f'  v_mov_b32 v4, s{40+2*k}')
        e(f'  v_mov_b32 v5, s{41+2*k}')
        e(f'  global_store_dwordx2 v2, v[4:5], s[36:37] offset:{k*8}')
        e('  s_nop 1')
    e('  s_waitcnt vmcnt(0)')

K = 'standalone__deep_cross_pnn__recsys_kernel'
hdr = open('standalone__deep_cross_pnn__recsys.s.ref').read().split('\n')
for l in hdr:
    if l.startswith('; @launch'):
        e(f'; @launch grid=(256,1,1) block=(512,1,1) lds={LDS}')
    elif l.startswith(';'):
        e(l)
    else:
        break
e('.amdgcn_target "amdgcn-amd-amdhsa--gfx950"')
e('.text')
e(f'.globl {K}')
e('.p2align 8')
e(f'.type {K},@function')
e(f'{K}:')
e('  s_cmp_ge_u32 s2, 256')
e('  s_cbranch_scc1 L_end')
if PROFILE:
    for k in range(NST):
        e(f'  s_mov_b64 s[{40+2*k}:{41+2*k}], 0')
stamp(0, rt=True)
stamp(1)
SPIN = opt('spin', 0); DBG = opt('dbg', 0)
if SPIN or DBG:
    e('  s_memrealtime s[90:91]')
    e('  s_memtime s[96:97]')
e('  s_load_dwordx16 s[72:87], s[0:1], 0')
e('  v_lshrrev_b32 v1, 6, v0')
e('  v_and_b32 v0, 63, v0')
e('  v_readfirstlane_b32 s33, v1')
e('  s_waitcnt lgkmcnt(0)')
def srd(d, p, n):
    e(f'  s_mov_b32 s{d}, s{p}')
    e(f'  s_and_b32 s{d+1}, s{p+1}, 0xffff')
    e(f'  s_mov_b32 s{d+2}, {n}')
    e(f'  s_mov_b32 s{d+3}, 0x20000')
e('  s_cmp_ge_u32 s33, 4')
e('  s_cbranch_scc1 L_pnn')
NS = 5
ACC = 0+4
SLAB = 36
TMP = 196
AFR = 212
VW1 = 1
VA = 2
VP = 3
srd(16, 78, 819200)
e('  v_lshrrev_b32 v2, 4, v0')
e('  v_and_b32 v3, 15, v0')
e('  v_lshlrev_b32 v1, 11, v2')
e('  v_lshl_add_u32 v1, v3, 4, v1')
e(f'  s_mul_i32 s20, s33, {25*8192}')
def slab_loads(i):
    for j in range(8):
        r = SLAB + i*32 + j*4
        e(f'  buffer_load_dwordx4 v[{r}:{r+3}], v{VW1}, s[16:19], s20 offen offset:{j*256}')
    e('  s_add_u32 s20, s20, 8192')
for i in range(NS):
    slab_loads(i)
stamp(2)
e('  v_lshrrev_b32 v220, 3, v3')
e('  v_lshlrev_b32 v220, 1, v220')
e('  v_xor_b32 v220, v220, v2')
e('  v_lshl_add_u32 v220, v3, 2, v220')
e('  v_lshlrev_b32 v220, 4, v220')
e(f'  s_mul_i32 s21, s33, {25*ES}')
e(f'  s_add_u32 s21, s21, {EBASE}')
e(f'  v_add_u32 v{VA}, s21, v220')
e(f'  s_mul_i32 s22, s33, {RS}')
e(f'  s_add_u32 s22, s22, {RBASE}')
e('  v_mul_u32_u24 v221, 528, v3')
e('  v_lshrrev_b32 v222, 4, v0')
e('  v_lshl_add_u32 v221, v222, 4, v221')
e('  v_add_u32 v221, s22, v221')
e('  s_lshl_b32 s23, s33, 2')
e(f'  s_add_u32 s23, s23, {FBASE}')
e(f'  v_mov_b32 v{VP}, s23')
for r in range(32):
    e(f'  v_mov_b32 v{ACC+r}, 0')
e('  s_mov_b32 s24, 0x05040100')
e('  s_mov_b32 s25, 0x07060302')
e('  s_mov_b32 s26, 5')
e('  s_barrier')
stamp(3)
e('L_mlp_loop:')
e('L_mlp_poll:')
e(f'  ds_read_b32 v223, v{VP}')
e('  s_waitcnt lgkmcnt(0)')
e('  v_readfirstlane_b32 s27, v223')
e('  s_cmp_ge_u32 s27, s26')
e('  s_cbranch_scc1 L_mlp_go')
e('  s_sleep 1')
e('  s_branch L_mlp_poll')
e('L_mlp_go:')
e('  s_cmp_eq_u32 s26, 25')
e('  s_cselect_b32 s18, 0, s18')
e(f'  ds_read_b128 v[{AFR}:{AFR+3}], v{VA}')
for st in range(NS):
    a = AFR + (st & 1) * 4
    an = AFR + ((st + 1) & 1) * 4
    if st + 1 < NS:
        e(f'  ds_read_b128 v[{an}:{an+3}], v{VA} offset:{(st+1)*ES}')
    e(f'  s_waitcnt vmcnt({8*(NS-1)})')
    sl = SLAB + st*32
    def perms(cp):
        tb = TMP + (cp & 1) * 8
        for h in range(2):
            for m in range(4):
                lo = sl + (2*m)*4 + cp
                hi = sl + (2*m+1)*4 + cp
                e(f'  v_perm_b32 v{tb+h*4+m}, v{hi}, v{lo}, s{24+h}')
    def mf(cp, h):
        tb = TMP + (cp & 1) * 8
        t = 2*cp + h
        e(f'  v_mfma_f32_16x16x32_bf16 v[{ACC+4*t}:{ACC+4*t+3}], v[{a}:{a+3}], v[{tb+h*4}:{tb+h*4+3}], v[{ACC+4*t}:{ACC+4*t+3}]')
    perms(0)
    e(f'  s_waitcnt lgkmcnt({1 if st+1 < NS else 0})')
    perms(1); mf(0,0); mf(0,1)
    perms(2); mf(1,0); mf(1,1)
    perms(3); mf(2,0); mf(2,1)
    for j in range(8):
        r = sl + j*4
        e(f'  buffer_load_dwordx4 v[{r}:{r+3}], v{VW1}, s[16:19], s20 offen offset:{j*256}')
        if j == 1: mf(3,0)
        if j == 3: mf(3,1)
    e('  s_add_u32 s20, s20, 8192')
e(f'  v_add_u32 v{VA}, {NS*ES}, v{VA}')
e('  s_add_u32 s26, s26, 5')
e('  s_cmp_le_u32 s26, 25')
e('  s_cbranch_scc1 L_mlp_loop')
stamp(4)
e('  s_nop 7')
for t in range(8):
    e(f'  ds_write_b128 v221, v[{ACC+4*t}:{ACC+4*t+3}] offset:{t*64}')
e('  s_waitcnt lgkmcnt(0)')
e('  s_barrier')
stamp(5)
stamp(NST-1, rt=True)
stamp_store()
e('  s_endpgm')
e('L_pnn:')
e('  s_sub_u32 s34, s33, 4')
srd(4, 72, 4096*400)
srd(8, 74, 6400000)
srd(12, 76, 20000)
srd(20, 80, 256)
srd(24, 82, 256)
srd(28, 86, 8192)
e('  s_load_dword s35, s[84:85], 0')
IDX = 200
e('  v_lshrrev_b32 v1, 2, v0')
e('  v_and_b32 v2, 3, v0')
e('  s_lshl_b32 s36, s2, 4')
e('  v_add_u32 v3, s36, v1')
e('  v_mul_u32_u24 v3, 400, v3')
e('  v_lshl_add_u32 v3, v2, 5, v3')
e('  s_mul_i32 s37, s34, 100')
e(f'  buffer_load_dwordx4 v[{IDX}:{IDX+3}], v3, s[4:7], s37 offen')
e(f'  buffer_load_dwordx4 v[{IDX+4}:{IDX+7}], v3, s[4:7], s37 offen offset:16')
e('  v_lshlrev_b32 v4, 4, v0')
e('  s_lshl_b32 s38, s34, 10')
e(f'  s_add_u32 s39, s38, {WBASE}')
for k in range(6):
    e(f'  s_mov_b32 m0, s39')
    e(f'  s_add_u32 s39, s39, 4096')
    e(f'  buffer_load_dwordx4 v4, s[12:15], s38 offen lds')
    e(f'  s_add_u32 s38, s38, 4096')
B1R = 240
e('  v_lshlrev_b32 v5, 1, v0')
e(f'  buffer_load_ushort v{B1R}, v5, s[20:23], 0 offen')
e(f'  buffer_load_ushort v{B1R+1}, v5, s[20:23], 0 offen offset:128')
e(f'  buffer_load_ushort v{B1R+2}, v5, s[24:27], 0 offen')
e(f'  buffer_load_ushort v{B1R+3}, v5, s[24:27], 0 offen offset:128')
e('  s_lshl_b32 s23, s34, 2')
e(f'  s_add_u32 s23, s23, {FBASE}')
e('  v_mov_b32 v244, s23')
e('  v_mov_b32 v6, 0')
e('  ds_write_b32 v244, v6')
e('  v_lshrrev_b32 v6, 5, v0')
e('  v_lshlrev_b32 v6, 1, v6')
e('  v_xor_b32 v6, v6, v2')
e('  v_lshlrev_b32 v6, 4, v6')
e('  v_and_b32 v7, 15, v0')
e('  v_lshrrev_b32 v8, 4, v0')
e('  v_lshlrev_b32 v9, 3, v8')
e('  v_sub_u32 v9, v7, v9')
e('  v_and_b32 v10, 1, v9')
e('  v_lshlrev_b32 v10, 4, v10')
e('  s_mov_b32 s39, 0x3f80')
e('  v_lshlrev_b32 v10, v10, s39')
e('  v_ashrrev_i32 v11, 1, v9')
e('  v_add_u32 v12, 8, v11')
e('  v_cmp_gt_u32 s[36:37], 4, v7')
for m in range(4):
    e(f'  v_cmp_eq_u32 vcc, {m}, v11')
    e('  s_nop 1')
    e(f'  v_cndmask_b32 v{224+m}, 0, v10, vcc')
    e(f'  v_cmp_eq_u32 vcc, {m}, v12')
    e('  s_nop 1')
    e(f'  v_cndmask_b32 v{228+m}, 0, v10, vcc')
for m in range(4):
    e(f'  v_cndmask_b32 v{232+m}, 0, v{224+m}, s[36:37]')
e('  v_mul_u32_u24 v13, 200, v7')
e('  v_lshl_add_u32 v13, v8, 4, v13')
e(f'  v_add_u32 v13, {WBASE}, v13')
stamp(2)
e('  s_waitcnt vmcnt(10)')
stamp(3)
for r in range(8):
    e(f'  v_lshlrev_b32 v{IDX+r}, 6, v{IDX+r}')
e(f'  s_mul_i32 s39, s34, {25*ES}')
e(f'  s_add_u32 s39, s39, {EBASE}')
e('  s_mov_b32 m0, s39')
for r in range(25):
    k = r >> 3
    e(f'  v_add_u32_dpp v14, v{IDX+(r&7)}, v6 quad_perm:[{k},{k},{k},{k}] row_mask:0xf bank_mask:0xf')
    e(f'  buffer_load_dwordx4 v14, s[8:11], 0 offen lds')
    if r < 24:
        e(f'  s_add_u32 m0, m0, {ES}')
stamp(4)
e('  s_waitcnt vmcnt(25) lgkmcnt(0)')
e('  s_barrier')
stamp(5)
e('  v_mov_b32 v236, v0')
e('  v_mov_b32 v237, v13')
FR = 112
for X in range(7):
    for kb in range(4):
        r = FR + (X*4+kb)*4
        off = X*3200 + kb*64
        e(f'  ds_read_b64 v[{r}:{r+1}], v237 offset:{off}')
        e(f'  ds_read_b64 v[{r+2}:{r+3}], v237 offset:{off+8}')
    if X >= 1 and X < 6:
        e('  s_waitcnt lgkmcnt(7)')
e('  s_waitcnt lgkmcnt(0)')
tiles = [(I, J) for J in range(7) for I in range(J+1)]
def F(X, kb): r = FR + (X*4+kb)*4; return f'v[{r}:{r+3}]'
def SEL(X):
    if X == 6: return 'v[232:235]'
    return 'v[224:227]' if X % 2 == 0 else 'v[228:231]'
for n, (I, J) in enumerate(tiles):
    d = f'v[{n*4}:{n*4+3}]'
    e(f'  v_mfma_f32_16x16x32_bf16 {d}, {F(I, J>>1)}, {SEL(J)}, 0')
    if I != J:
        e(f'  v_mfma_f32_16x16x32_bf16 {d}, {SEL(I)}, {F(J, I>>1)}, {d}')
stamp(6)
for g in range(1, 6):
    e(f'  s_waitcnt vmcnt({25-5*g})')
    e(f'  v_mov_b32 v238, {5*g}')
    e('  ds_write_b32 v244, v238')
stamp(7)
EF = 112
DB = 140
AC = 152
RES = 156
e('  v_and_b32 v200, 15, v236')
e('  v_lshrrev_b32 v201, 4, v236')
e('  s_lshr_b32 s36, s34, 1')
e('  s_lshl_b32 s36, s36, 1')
e('  v_xor_b32 v201, s36, v201')
e('  s_lshl_b32 s37, s34, 4')
e('  v_add_u32 v201, s37, v201')
e('  v_lshlrev_b32 v201, 4, v201')
e(f'  v_add_u32 v201, {EBASE}, v201')
e(f'  v_mov_b32 v202, {ES}')
e('  v_mad_u32_u24 v203, v200, v202, v201')
e(f'  v_add_u32 v204, {4*16*ES}, v203')
e('  v_and_b32 v200, 3, v200')
e('  v_add_u32 v200, 96, v200')
e('  v_mad_u32_u24 v205, v200, v202, v201')
e(f'  v_mov_b32 v206, {FBASE}')
e('L_pnn_poll:')
e('  ds_read_b128 v[208:211], v206')
e('  s_waitcnt lgkmcnt(0)')
e('  v_min_u32 v208, v208, v209')
e('  v_min3_u32 v208, v208, v210, v211')
e('  s_nop 0')
e('  v_readfirstlane_b32 s27, v208')
e('  s_cmp_ge_u32 s27, 25')
e('  s_cbranch_scc1 L_pnn_go')
e('  s_sleep 1')
e('  s_branch L_pnn_poll')
e('L_pnn_go:')
stamp(8)
e('  s_mov_b32 s26, 0')
e('L_pnn_loop:')
for I in range(4):
    e(f'  ds_read_b128 v[{EF+4*I}:{EF+4*I+3}], v203 offset:{I*16*ES}')
for I in range(4, 6):
    e(f'  ds_read_b128 v[{EF+4*I}:{EF+4*I+3}], v204 offset:{(I-4)*16*ES}')
e(f'  ds_read_b128 v[{EF+24}:{EF+27}], v205')
for r in range(4):
    e(f'  v_mov_b32 v{AC+r}, 0')
def fm(n):
    d = DB + (n % 3) * 4
    for r in range(4):
        e(f'  v_fmac_f32 v{AC+r}, v{d+r}, v{n*4+r}')
lastJ = -1
for n, (I, J) in enumerate(tiles):
    if J != lastJ:
        e(f'  s_waitcnt lgkmcnt({6-J})')
        lastJ = J
    d = DB + (n % 3) * 4
    e(f'  v_mfma_f32_16x16x32_bf16 v[{d}:{d+3}], v[{EF+4*I}:{EF+4*I+3}], v[{EF+4*J}:{EF+4*J+3}], 0')
    if n >= 2:
        if n == 2: e('  s_nop 5')
        fm(n-2)
e('  s_nop 3')
fm(26)
e('  s_nop 3')
fm(27)
e(f'  v_add_f32 v{AC}, v{AC}, v{AC+1}')
e(f'  v_add_f32 v{AC+2}, v{AC+2}, v{AC+3}')
e(f'  v_mov_b32 v{RES}, v{RES+1}')
e(f'  v_mov_b32 v{RES+1}, v{RES+2}')
e(f'  v_mov_b32 v{RES+2}, v{RES+3}')
e(f'  v_add_f32 v{RES+3}, v{AC}, v{AC+2}')
e('  v_add_u32 v203, 64, v203')
e('  v_add_u32 v204, 64, v204')
e('  v_add_u32 v205, 64, v205')
e('  s_add_u32 s26, s26, 1')
e('  s_cmp_lt_u32 s26, 4')
e('  s_cbranch_scc1 L_pnn_loop')
stamp(9)
e('  v_lshrrev_b32 v200, 3, v236')
e('  v_and_b32 v201, 7, v236')
e('  v_mul_u32_u24 v200, 528, v200')
e('  v_lshl_add_u32 v200, v201, 6, v200')
e('  s_lshl_b32 s36, s34, 4')
e(f'  s_add_u32 s36, s36, {RBASE}')
e('  v_add_u32 v200, s36, v200')
for r in range(4):
    e(f'  v_lshlrev_b32 v{B1R+r}, 16, v{B1R+r}')
e('  s_mov_b32 s36, 0xc0135761')
e('  s_mov_b32 s37, 0xbdd2d3e8')
e('  s_barrier')
stamp(10)
P = 0
for half in range(2):
    for w in range(4):
        r = P + half*16 + w*4
        e(f'  ds_read_b128 v[{r}:{r+3}], v200 offset:{w*RS + half*4224}')
for half in range(2):
    e(f'  s_waitcnt lgkmcnt({4 if half == 0 else 0})')
    b = P + half*16
    for r in range(4):
        e(f'  v_add_f32 v{b+r}, v{b+r}, v{b+4+r}')
        e(f'  v_add_f32 v{b+8+r}, v{b+8+r}, v{b+12+r}')
    for r in range(4):
        e(f'  v_add_f32 v{b+r}, v{b+r}, v{b+8+r}')
    for r in range(4):
        e(f'  v_add_f32 v{b+r}, v{b+r}, v{B1R+half}')
    for r in range(4):
        e(f'  v_mul_f32 v{b+4+r}, v{b+r}, v{b+r}')
    e('  v_mov_b32 v40, s36')
    for r in range(4):
        e(f'  v_fma_f32 v{b+4+r}, v{b+4+r}, s37, v40')
    for r in range(4):
        e(f'  v_mul_f32 v{b+4+r}, v{b+4+r}, v{b+r}')
    for r in range(4):
        e(f'  v_exp_f32 v{b+4+r}, v{b+4+r}')
    for r in range(4):
        e(f'  v_add_f32 v{b+4+r}, 1.0, v{b+4+r}')
    for r in range(4):
        e(f'  v_rcp_f32 v{b+4+r}, v{b+4+r}')
    for r in range(4):
        e(f'  v_mul_f32 v{b+4+r}, v{b+4+r}, v{b+r}')
    for r in range(4):
        e(f'  v_fmac_f32 v{RES+r}, v{b+4+r}, v{B1R+2+half}')
for sh in ['row_shr:1', 'row_shr:2', 'row_shr:4', 'row_shr:8']:
    for r in range(4):
        e(f'  v_add_f32_dpp v{RES+r}, v{RES+r}, v{RES+r} {sh} row_mask:0xf bank_mask:0xf')
for r in range(4):
    e(f'  v_add_f32_dpp v{RES+r}, v{RES+r}, v{RES+r} row_bcast:15 row_mask:0xa bank_mask:0xf')
for r in range(4):
    e(f'  v_add_f32_dpp v{RES+r}, v{RES+r}, v{RES+r} row_bcast:31 row_mask:0xc bank_mask:0xf')
e('  s_lshl_b32 s35, s35, 16')
for r in range(4):
    e(f'  v_add_f32 v{RES+r}, s35, v{RES+r}')
e(f'  v_cvt_pk_bf16_f32 v40, v{RES}, v{RES+1}')
e(f'  v_cvt_pk_bf16_f32 v41, v{RES+2}, v{RES+3}')
e('  s_lshl_b32 s36, s2, 5')
e('  s_lshl_b32 s37, s34, 3')
e('  s_add_u32 s36, s36, s37')
e('  v_mov_b32 v42, s36')
e('  s_mov_b64 exec, 0x8000000000000000' if 0 else '  s_mov_b32 exec_lo, 0')
e('  s_mov_b32 exec_hi, 0x80000000')
e('  buffer_store_dwordx2 v[40:41], v42, s[28:31], 0 offen')
if SPIN:
    e('L_spin:')
    e('  s_memrealtime s[92:93]')
    e('  s_waitcnt lgkmcnt(0)')
    e('  s_sub_u32 s92, s92, s90')
    e(f'  s_cmp_lt_u32 s92, {SPIN*100}')
    e('  s_cbranch_scc1 L_spin')
if DBG:
    e('  s_waitcnt vmcnt(0)')
    e('  s_memrealtime s[92:93]')
    e('  s_memtime s[98:99]')
    e('  s_load_dwordx2 s[94:95], s[0:1], 64')
    e('  s_waitcnt lgkmcnt(0)')
    e('  s_mov_b64 exec, 1')
    e('  s_not_b32 s90, s90')
    e('  s_sub_u32 s98, s98, s96')
    e('  v_mov_b32 v2, 0')
    e('  v_mov_b32 v4, s90')
    e('  v_mov_b32 v5, s92')
    e('  v_mov_b32 v6, s98')
    e('  global_atomic_umax v2, v4, s[94:95]')
    e('  global_atomic_umax v2, v5, s[94:95] offset:4')
    e('  global_atomic_umax v2, v6, s[94:95] offset:8')
    e('  s_waitcnt vmcnt(0)')
stamp(11)
stamp(NST-1, rt=True)
stamp_store()
e('L_end:')
e('  s_endpgm')
e('.section .rodata,"a"')
e('.p2align 6')
e(f'.amdhsa_kernel {K}')
e('  .amdhsa_next_free_vgpr 256')
e('  .amdhsa_next_free_sgpr 102')
e('  .amdhsa_accum_offset 256')
e('  .amdhsa_group_segment_fixed_size 0')
e('  .amdhsa_kernarg_size 80')
e('  .amdhsa_user_sgpr_count 2')
e('  .amdhsa_user_sgpr_kernarg_segment_ptr 1')
e('  .amdhsa_system_sgpr_workgroup_id_x 1')
e('.end_amdhsa_kernel')
open(sys.argv[1], 'w').write('\n'.join(L) + '\n')
print('LDS', LDS)
```

```python
import sys
PROFILE = int(sys.argv[2]) if len(sys.argv) > 2 else 0
OPT = dict(kv.split('=') for kv in sys.argv[3:])
def opt(k, d): return int(OPT.get(k, d))
L = []
def e(s=''): L.append(s)
ES = 1056
EBASE = 0
WBASE = 105600
RBASE = WBASE + 22528
RS = 8448
FBASE = RBASE + 4 * RS
LDS = FBASE + 64
NST = 16
stamp_n = [0]
def stamp(k, rt=False):
    if not PROFILE: return
    e(f'  s_mem{"real" if rt else ""}time s[{40+2*k}:{41+2*k}]')
    e('  s_waitcnt lgkmcnt(0)')
def stamp_store():
    if not PROFILE: return
    e('  s_load_dwordx2 s[36:37], s[0:1], 72')
    e(f'  s_lshl_b32 s38, s2, 3')
    e(f'  s_add_u32 s38, s38, s33')
    e(f'  s_mul_i32 s38, s38, {NST*8}')
    e('  s_waitcnt lgkmcnt(0)')
    e('  s_add_u32 s36, s36, s38')
    e('  s_addc_u32 s37, s37, 0')
    e('  s_mov_b64 exec, 1')
    e('  v_mov_b32 v2, 0')
    for k in range(NST):
        e(f'  v_mov_b32 v4, s{40+2*k}')
        e(f'  v_mov_b32 v5, s{41+2*k}')
        e(f'  global_store_dwordx2 v2, v[4:5], s[36:37] offset:{k*8}')
        e('  s_nop 1')
    e('  s_waitcnt vmcnt(0)')

K = 'standalone__deep_cross_pnn__recsys_kernel'
hdr = open('standalone__deep_cross_pnn__recsys.s.ref').read().split('\n')
for l in hdr:
    if l.startswith('; @launch'):
        e(f'; @launch grid=(256,1,1) block=(512,1,1) lds={LDS}')
    elif l.startswith(';'):
        e(l)
    else:
        break
e('.amdgcn_target "amdgcn-amd-amdhsa--gfx950"')
e('.text')
e(f'.globl {K}')
e('.p2align 8')
e(f'.type {K},@function')
e(f'{K}:')
e('  s_cmp_ge_u32 s2, 256')
e('  s_cbranch_scc1 L_end')
if PROFILE:
    for k in range(NST):
        e(f'  s_mov_b64 s[{40+2*k}:{41+2*k}], 0')
stamp(0, rt=True)
stamp(1)
SPIN = opt('spin', 0); DBG = opt('dbg', 0)
if SPIN or DBG:
    e('  s_memrealtime s[90:91]')
    e('  s_memtime s[96:97]')
e('  s_load_dwordx16 s[72:87], s[0:1], 0')
e('  v_lshrrev_b32 v1, 6, v0')
e('  v_and_b32 v0, 63, v0')
e('  v_readfirstlane_b32 s33, v1')
e('  s_waitcnt lgkmcnt(0)')
def srd(d, p, n):
    e(f'  s_mov_b32 s{d}, s{p}')
    e(f'  s_and_b32 s{d+1}, s{p+1}, 0xffff')
    e(f'  s_mov_b32 s{d+2}, {n}')
    e(f'  s_mov_b32 s{d+3}, 0x20000')
e('  s_cmp_ge_u32 s33, 4')
e('  s_cbranch_scc1 L_pnn')
NS = 5
ACC = 0+4
SLAB = 36
TMP = 196
AFR = 212
VW1 = 1
VA = 2
VP = 3
e('  s_barrier')
srd(16, 78, 819200)
e('  v_lshrrev_b32 v2, 4, v0')
e('  v_and_b32 v3, 15, v0')
e('  v_lshlrev_b32 v1, 11, v2')
e('  v_lshl_add_u32 v1, v3, 4, v1')
ROT = opt('rot', 1)
e(f'  s_mul_i32 s28, s33, {25*8192}')
if ROT:
    e('  s_lshr_b32 s29, s2, 3')
    e('  s_mul_i32 s30, s29, 52429')
    e('  s_lshr_b32 s30, s30, 18')
    e('  s_mul_i32 s30, s30, 5')
    e('  s_sub_u32 s29, s29, s30')
else:
    e('  s_mov_b32 s29, 0')
e(f'  s_mul_i32 s30, s29, {5*8192}')
e('  s_add_u32 s20, s28, s30')
def slab_loads(i):
    for j in range(8):
        r = SLAB + i*32 + j*4
        e(f'  buffer_load_dwordx4 v[{r}:{r+3}], v{VW1}, s[16:19], s20 offen offset:{j*256}')
    e('  s_add_u32 s20, s20, 8192')
MD = opt('mdelay', 0)
if MD:
    e(f'  s_nop {MD}')
for i in range(NS):
    slab_loads(i)
e('  s_add_u32 s31, s29, 1')
e('  s_cmp_eq_u32 s31, 5')
e('  s_cselect_b32 s31, 0, s31')
e(f'  s_mul_i32 s30, s31, {5*8192}')
e('  s_add_u32 s20, s28, s30')
stamp(2)
e('  v_lshrrev_b32 v220, 3, v3')
e('  v_lshlrev_b32 v220, 1, v220')
e('  v_xor_b32 v220, v220, v2')
e('  v_lshl_add_u32 v220, v3, 2, v220')
e('  v_lshlrev_b32 v220, 4, v220')
e(f'  s_mul_i32 s21, s33, {25*ES}')
e(f'  s_add_u32 s21, s21, {EBASE}')
e(f'  s_mul_i32 s30, s29, {5*ES}')
e('  s_add_u32 s30, s30, s21')
e(f'  v_add_u32 v{VA}, s30, v220')
e(f'  s_mul_i32 s22, s33, {RS}')
e(f'  s_add_u32 s22, s22, {RBASE}')
e('  v_mul_u32_u24 v221, 528, v3')
e('  v_lshrrev_b32 v222, 4, v0')
e('  v_lshl_add_u32 v221, v222, 4, v221')
e('  v_add_u32 v221, s22, v221')
e('  s_lshl_b32 s23, s33, 2')
e(f'  s_add_u32 s23, s23, {FBASE}')
e(f'  v_mov_b32 v{VP}, s23')
for r in range(32):
    e(f'  v_mov_b32 v{ACC+r}, 0')
e('  s_mov_b32 s24, 0x05040100')
e('  s_mov_b32 s25, 0x07060302')
e('  s_mov_b32 s26, 5')
e(f'  s_setprio {opt("mprio", 1)}')
e('  s_barrier')
stamp(3)
e('L_mlp_loop:')
e('  s_cmp_eq_u32 s26, 25')
e('  s_cselect_b32 s18, 0, s18')
e(f'  ds_read_b128 v[{AFR}:{AFR+3}], v{VA}')
for st in range(NS):
    a = AFR + (st & 1) * 4
    an = AFR + ((st + 1) & 1) * 4
    if st + 1 < NS:
        e(f'  ds_read_b128 v[{an}:{an+3}], v{VA} offset:{(st+1)*ES}')
    e(f'  s_waitcnt vmcnt({8*(NS-1)})')
    sl = SLAB + st*32
    def perms(cp):
        tb = TMP + (cp & 1) * 8
        for h in range(2):
            for m in range(4):
                lo = sl + (2*m)*4 + cp
                hi = sl + (2*m+1)*4 + cp
                e(f'  v_perm_b32 v{tb+h*4+m}, v{hi}, v{lo}, s{24+h}')
    def mf(cp, h):
        tb = TMP + (cp & 1) * 8
        t = 2*cp + h
        e(f'  v_mfma_f32_16x16x32_bf16 v[{ACC+4*t}:{ACC+4*t+3}], v[{a}:{a+3}], v[{tb+h*4}:{tb+h*4+3}], v[{ACC+4*t}:{ACC+4*t+3}]')
    perms(0)
    e(f'  s_waitcnt lgkmcnt({1 if st+1 < NS else 0})')
    perms(1); mf(0,0); mf(0,1)
    perms(2); mf(1,0); mf(1,1)
    perms(3); mf(2,0); mf(2,1)
    for j in range(8):
        r = sl + j*4
        e(f'  buffer_load_dwordx4 v[{r}:{r+3}], v{VW1}, s[16:19], s20 offen offset:{j*256}')
        if j == 1: mf(3,0)
        if j == 3: mf(3,1)
    e('  s_add_u32 s20, s20, 8192')
e('  s_mov_b32 s29, s31')
e(f'  s_mul_i32 s30, s29, {5*ES}')
e('  s_add_u32 s30, s30, s21')
e(f'  v_add_u32 v{VA}, s30, v220')
e('  s_add_u32 s31, s31, 1')
e('  s_cmp_eq_u32 s31, 5')
e('  s_cselect_b32 s31, 0, s31')
e(f'  s_mul_i32 s30, s31, {5*8192}')
e('  s_add_u32 s20, s28, s30')
e('  s_add_u32 s26, s26, 5')
e('  s_cmp_le_u32 s26, 25')
e('  s_cbranch_scc1 L_mlp_loop')
stamp(4)
e('  s_nop 7')
for t in range(8):
    e(f'  ds_write_b128 v221, v[{ACC+4*t}:{ACC+4*t+3}] offset:{t*64}')
e('  s_waitcnt lgkmcnt(0)')
e('  s_barrier')
stamp(5)
stamp(NST-1, rt=True)
stamp_store()
e('  s_endpgm')
e('L_pnn:')
if opt('prio', 3): e(f'  s_setprio {opt("prio", 3)}')
e('  s_sub_u32 s34, s33, 4')
e(f'  v_mov_b32 v244, {FBASE}')
e('  v_mov_b32 v6, 0')
e('  ds_write_b32 v244, v6')
e('  s_waitcnt lgkmcnt(0)')
e('  s_barrier')
srd(4, 72, 4096*400)
srd(8, 74, 6400000)
srd(12, 76, 20000)
srd(20, 80, 256)
srd(24, 82, 256)
srd(28, 86, 8192)
e('  s_load_dword s35, s[84:85], 0')
IDX = 200
e('  v_lshrrev_b32 v1, 2, v0')
e('  v_and_b32 v2, 3, v0')
e('  s_lshl_b32 s36, s2, 4')
e('  v_add_u32 v3, s36, v1')
e('  v_mul_u32_u24 v3, 400, v3')
e('  v_lshl_add_u32 v3, v2, 5, v3')
e('  s_mul_i32 s37, s34, 100')
e(f'  buffer_load_dwordx4 v[{IDX}:{IDX+3}], v3, s[4:7], s37 offen')
e(f'  buffer_load_dwordx4 v[{IDX+4}:{IDX+7}], v3, s[4:7], s37 offen offset:16')
e('  v_lshlrev_b32 v4, 4, v0')
e('  s_lshl_b32 s38, s34, 10')
e(f'  s_add_u32 s39, s38, {WBASE}')
for k in range(6):
    e(f'  s_mov_b32 m0, s39')
    e(f'  s_add_u32 s39, s39, 4096')
    e(f'  buffer_load_dwordx4 v4, s[12:15], s38 offen lds')
    e(f'  s_add_u32 s38, s38, 4096')
B1R = 240
e('  v_lshlrev_b32 v5, 1, v0')
e(f'  buffer_load_ushort v{B1R}, v5, s[20:23], 0 offen')
e(f'  buffer_load_ushort v{B1R+1}, v5, s[20:23], 0 offen offset:128')
e(f'  buffer_load_ushort v{B1R+2}, v5, s[24:27], 0 offen')
e(f'  buffer_load_ushort v{B1R+3}, v5, s[24:27], 0 offen offset:128')
e('  v_lshrrev_b32 v6, 5, v0')
e('  v_lshlrev_b32 v6, 1, v6')
e('  v_xor_b32 v6, v6, v2')
e('  v_lshlrev_b32 v6, 4, v6')
e('  v_and_b32 v7, 15, v0')
e('  v_lshrrev_b32 v8, 4, v0')
e('  v_lshlrev_b32 v9, 3, v8')
e('  v_sub_u32 v9, v7, v9')
e('  v_and_b32 v10, 1, v9')
e('  v_lshlrev_b32 v10, 4, v10')
e('  s_mov_b32 s39, 0x3f80')
e('  v_lshlrev_b32 v10, v10, s39')
e('  v_ashrrev_i32 v11, 1, v9')
e('  v_add_u32 v12, 8, v11')
e('  v_cmp_gt_u32 s[36:37], 4, v7')
for m in range(4):
    e(f'  v_cmp_eq_u32 vcc, {m}, v11')
    e('  s_nop 1')
    e(f'  v_cndmask_b32 v{224+m}, 0, v10, vcc')
    e(f'  v_cmp_eq_u32 vcc, {m}, v12')
    e('  s_nop 1')
    e(f'  v_cndmask_b32 v{228+m}, 0, v10, vcc')
for m in range(4):
    e(f'  v_cndmask_b32 v{232+m}, 0, v{224+m}, s[36:37]')
e('  v_mul_u32_u24 v13, 200, v7')
e('  v_lshl_add_u32 v13, v8, 4, v13')
e(f'  v_add_u32 v13, {WBASE}, v13')
stamp(2)
e('  s_waitcnt vmcnt(10)')
stamp(3)
for r in range(8):
    e(f'  v_lshlrev_b32 v{IDX+r}, 6, v{IDX+r}')
e(f'  s_mul_i32 s39, s34, {25*ES}')
e(f'  s_add_u32 s39, s39, {EBASE}')
e('  s_mov_b32 m0, s39')
for r in range(25):
    k = r >> 3
    e(f'  v_add_u32_dpp v14, v{IDX+(r&7)}, v6 quad_perm:[{k},{k},{k},{k}] row_mask:0xf bank_mask:0xf')
    e(f'  buffer_load_dwordx4 v14, s[8:11], 0 offen lds')
    if r < 24:
        e(f'  s_add_u32 m0, m0, {ES}')
stamp(4)
WB = opt('wbar', 1)
e('  s_setprio 0')
e('  s_waitcnt vmcnt(25) lgkmcnt(0)')
e('  s_mov_b64 s[36:37], exec')
e('  s_mov_b64 exec, 1')
e('  v_mov_b32 v238, 1')
e('  ds_add_u32 v244, v238')
e('  s_mov_b64 exec, s[36:37]')
e('L_w_poll:')
e('  ds_read_b32 v238, v244')
e('  s_waitcnt lgkmcnt(0)')
e('  v_readfirstlane_b32 s27, v238')
e('  s_cmp_ge_u32 s27, 4')
e('  s_cbranch_scc1 L_w_go')
e('  s_sleep 1')
e('  s_branch L_w_poll')
e('L_w_go:')
stamp(5)
e('  v_mov_b32 v236, v0')
e('  v_mov_b32 v237, v13')
FR = 112
for X in range(7):
    for kb in range(4):
        r = FR + (X*4+kb)*4
        off = X*3200 + kb*64
        e(f'  ds_read_b64 v[{r}:{r+1}], v237 offset:{off}')
        e(f'  ds_read_b64 v[{r+2}:{r+3}], v237 offset:{off+8}')
    if X >= 1 and X < 6:
        e('  s_waitcnt lgkmcnt(7)')
e('  s_waitcnt lgkmcnt(0)')
tiles = [(I, J) for J in range(7) for I in range(J+1)]
def F(X, kb): r = FR + (X*4+kb)*4; return f'v[{r}:{r+3}]'
def SEL(X):
    if X == 6: return 'v[232:235]'
    return 'v[224:227]' if X % 2 == 0 else 'v[228:231]'
for n, (I, J) in enumerate(tiles):
    d = f'v[{n*4}:{n*4+3}]'
    e(f'  v_mfma_f32_16x16x32_bf16 {d}, {F(I, J>>1)}, {SEL(J)}, 0')
    if I != J:
        e(f'  v_mfma_f32_16x16x32_bf16 {d}, {SEL(I)}, {F(J, I>>1)}, {d}')
stamp(6)
e('  s_waitcnt vmcnt(0)')
e('  s_barrier')
stamp(7)
EF = 112
DB = 140
AC = 152
RES = 156
e('  v_and_b32 v200, 15, v236')
e('  v_lshrrev_b32 v201, 4, v236')
e('  s_lshr_b32 s36, s34, 1')
e('  s_lshl_b32 s36, s36, 1')
e('  v_xor_b32 v201, s36, v201')
e('  s_lshl_b32 s37, s34, 4')
e('  v_add_u32 v201, s37, v201')
e('  v_lshlrev_b32 v201, 4, v201')
e(f'  v_add_u32 v201, {EBASE}, v201')
e(f'  v_mov_b32 v202, {ES}')
e('  v_mad_u32_u24 v203, v200, v202, v201')
e(f'  v_add_u32 v204, {4*16*ES}, v203')
e('  v_and_b32 v200, 3, v200')
e('  v_add_u32 v200, 96, v200')
e('  v_mad_u32_u24 v205, v200, v202, v201')
stamp(8)
e('  s_mov_b32 s26, 0')
e('L_pnn_loop:')
for I in range(4):
    e(f'  ds_read_b128 v[{EF+4*I}:{EF+4*I+3}], v203 offset:{I*16*ES}')
for I in range(4, 6):
    e(f'  ds_read_b128 v[{EF+4*I}:{EF+4*I+3}], v204 offset:{(I-4)*16*ES}')
e(f'  ds_read_b128 v[{EF+24}:{EF+27}], v205')
for r in range(4):
    e(f'  v_mov_b32 v{AC+r}, 0')
def fm(n):
    d = DB + (n % 3) * 4
    for r in range(4):
        e(f'  v_fmac_f32 v{AC+r}, v{d+r}, v{n*4+r}')
lastJ = -1
for n, (I, J) in enumerate(tiles):
    if J != lastJ:
        e(f'  s_waitcnt lgkmcnt({6-J})')
        lastJ = J
    d = DB + (n % 3) * 4
    e(f'  v_mfma_f32_16x16x32_bf16 v[{d}:{d+3}], v[{EF+4*I}:{EF+4*I+3}], v[{EF+4*J}:{EF+4*J+3}], 0')
    if n >= 2:
        if n == 2: e('  s_nop 5')
        fm(n-2)
e('  s_nop 3')
fm(26)
e('  s_nop 3')
fm(27)
e(f'  v_add_f32 v{AC}, v{AC}, v{AC+1}')
e(f'  v_add_f32 v{AC+2}, v{AC+2}, v{AC+3}')
e(f'  v_mov_b32 v{RES}, v{RES+1}')
e(f'  v_mov_b32 v{RES+1}, v{RES+2}')
e(f'  v_mov_b32 v{RES+2}, v{RES+3}')
e(f'  v_add_f32 v{RES+3}, v{AC}, v{AC+2}')
e('  v_add_u32 v203, 64, v203')
e('  v_add_u32 v204, 64, v204')
e('  v_add_u32 v205, 64, v205')
e('  s_add_u32 s26, s26, 1')
e('  s_cmp_lt_u32 s26, 4')
e('  s_cbranch_scc1 L_pnn_loop')
stamp(9)
e('  v_lshrrev_b32 v200, 3, v236')
e('  v_and_b32 v201, 7, v236')
e('  v_mul_u32_u24 v200, 528, v200')
e('  v_lshl_add_u32 v200, v201, 6, v200')
e('  s_lshl_b32 s36, s34, 4')
e(f'  s_add_u32 s36, s36, {RBASE}')
e('  v_add_u32 v200, s36, v200')
for r in range(4):
    e(f'  v_lshlrev_b32 v{B1R+r}, 16, v{B1R+r}')
e('  s_mov_b32 s36, 0xc0135761')
e('  s_mov_b32 s37, 0xbdd2d3e8')
e('  s_barrier')
stamp(10)
P = 0
for half in range(2):
    for w in range(4):
        r = P + half*16 + w*4
        e(f'  ds_read_b128 v[{r}:{r+3}], v200 offset:{w*RS + half*4224}')
for half in range(2):
    e(f'  s_waitcnt lgkmcnt({4 if half == 0 else 0})')
    b = P + half*16
    for r in range(4):
        e(f'  v_add_f32 v{b+r}, v{b+r}, v{b+4+r}')
        e(f'  v_add_f32 v{b+8+r}, v{b+8+r}, v{b+12+r}')
    for r in range(4):
        e(f'  v_add_f32 v{b+r}, v{b+r}, v{b+8+r}')
    for r in range(4):
        e(f'  v_add_f32 v{b+r}, v{b+r}, v{B1R+half}')
    for r in range(4):
        e(f'  v_mul_f32 v{b+4+r}, v{b+r}, v{b+r}')
    e('  v_mov_b32 v40, s36')
    for r in range(4):
        e(f'  v_fma_f32 v{b+4+r}, v{b+4+r}, s37, v40')
    for r in range(4):
        e(f'  v_mul_f32 v{b+4+r}, v{b+4+r}, v{b+r}')
    for r in range(4):
        e(f'  v_exp_f32 v{b+4+r}, v{b+4+r}')
    for r in range(4):
        e(f'  v_add_f32 v{b+4+r}, 1.0, v{b+4+r}')
    for r in range(4):
        e(f'  v_rcp_f32 v{b+4+r}, v{b+4+r}')
    for r in range(4):
        e(f'  v_mul_f32 v{b+4+r}, v{b+4+r}, v{b+r}')
    for r in range(4):
        e(f'  v_fmac_f32 v{RES+r}, v{b+4+r}, v{B1R+2+half}')
for sh in ['row_shr:1', 'row_shr:2', 'row_shr:4', 'row_shr:8']:
    for r in range(4):
        e(f'  v_add_f32_dpp v{RES+r}, v{RES+r}, v{RES+r} {sh} row_mask:0xf bank_mask:0xf')
for r in range(4):
    e(f'  v_add_f32_dpp v{RES+r}, v{RES+r}, v{RES+r} row_bcast:15 row_mask:0xa bank_mask:0xf')
for r in range(4):
    e(f'  v_add_f32_dpp v{RES+r}, v{RES+r}, v{RES+r} row_bcast:31 row_mask:0xc bank_mask:0xf')
e('  s_lshl_b32 s35, s35, 16')
for r in range(4):
    e(f'  v_add_f32 v{RES+r}, s35, v{RES+r}')
e(f'  v_cvt_pk_bf16_f32 v40, v{RES}, v{RES+1}')
e(f'  v_cvt_pk_bf16_f32 v41, v{RES+2}, v{RES+3}')
e('  s_lshl_b32 s36, s2, 5')
e('  s_lshl_b32 s37, s34, 3')
e('  s_add_u32 s36, s36, s37')
e('  v_mov_b32 v42, s36')
e('  s_mov_b64 exec, 0x8000000000000000' if 0 else '  s_mov_b32 exec_lo, 0')
e('  s_mov_b32 exec_hi, 0x80000000')
e('  buffer_store_dwordx2 v[40:41], v42, s[28:31], 0 offen')
if SPIN:
    e('L_spin:')
    e('  s_memrealtime s[92:93]')
    e('  s_waitcnt lgkmcnt(0)')
    e('  s_sub_u32 s92, s92, s90')
    e(f'  s_cmp_lt_u32 s92, {SPIN*100}')
    e('  s_cbranch_scc1 L_spin')
if DBG:
    e('  s_waitcnt vmcnt(0)')
    e('  s_memrealtime s[92:93]')
    e('  s_memtime s[98:99]')
    e('  s_load_dwordx2 s[94:95], s[0:1], 64')
    e('  s_waitcnt lgkmcnt(0)')
    e('  s_mov_b64 exec, 1')
    e('  s_not_b32 s90, s90')
    e('  s_sub_u32 s98, s98, s96')
    e('  v_mov_b32 v2, 0')
    e('  v_mov_b32 v4, s90')
    e('  v_mov_b32 v5, s92')
    e('  v_mov_b32 v6, s98')
    e('  global_atomic_umax v2, v4, s[94:95]')
    e('  global_atomic_umax v2, v5, s[94:95] offset:4')
    e('  global_atomic_umax v2, v6, s[94:95] offset:8')
    e('  s_waitcnt vmcnt(0)')
stamp(11)
stamp(NST-1, rt=True)
stamp_store()
e('L_end:')
e('  s_endpgm')
e('.section .rodata,"a"')
e('.p2align 6')
e(f'.amdhsa_kernel {K}')
e('  .amdhsa_next_free_vgpr 256')
e('  .amdhsa_next_free_sgpr 102')
e('  .amdhsa_accum_offset 256')
e('  .amdhsa_group_segment_fixed_size 0')
e('  .amdhsa_kernarg_size 80')
e('  .amdhsa_user_sgpr_count 2')
e('  .amdhsa_user_sgpr_kernarg_segment_ptr 1')
e('  .amdhsa_system_sgpr_workgroup_id_x 1')
e('.end_amdhsa_kernel')
open(sys.argv[1], 'w').write('\n'.join(L) + '\n')
print('LDS', LDS)
```

```python
import sys
PROFILE = int(sys.argv[2]) if len(sys.argv) > 2 else 0
OPT = dict(kv.split('=') for kv in sys.argv[3:])
def opt(k, d): return int(OPT.get(k, d))
L = []
def e(s=''): L.append(s)
ES = 1056
PSZ = 25 * ES
EO = 0
P0 = 106496
P1 = P0 + PSZ
WB = P1
IB = WB + 22528
CB = IB + 6400
RB = CB + 64
LDS = RB + 256
assert LDS <= 163840
C_M, C_W, C_WD, C_GL, C_P = CB, CB + 4, CB + 8, CB + 12, CB + 16
MSG = 0
FLG = 1 << 24
EPO = FLG + (1 << 20)
STW = 1 << 25
NST = 16
SPINMAX = 200000
def stamp(k, rt=False):
    if not PROFILE: return
    e(f'  s_mem{"real" if rt else ""}time s[{40+2*k}:{41+2*k}]')
    e('  s_waitcnt lgkmcnt(0)')
def stamp_store():
    if not PROFILE: return
    e(f'  s_lshl_b32 s38, s2, 3')
    e(f'  s_add_u32 s38, s38, s33')
    e(f'  s_mul_i32 s38, s38, {NST*8}')
    e('  s_add_u32 s36, s90, s38')
    e('  s_addc_u32 s37, s91, 0')
    e('  s_mov_b64 exec, 1')
    e('  v_mov_b32 v2, 0')
    for k in range(NST):
        e(f'  v_mov_b32 v4, s{40+2*k}')
        e(f'  v_mov_b32 v5, s{41+2*k}')
        e(f'  global_store_dwordx2 v2, v[4:5], s[36:37] offset:{k*8}')
        e('  s_nop 1')
    e('  s_waitcnt vmcnt(0)')
if PROFILE:
    MSG = 1 << 25
lab = [0]
def newlab(p):
    lab[0] += 1
    return f'L_{p}_{lab[0]}'
def cnt_inc(areg, vtmp):
    e('  s_mov_b64 exec, 1')
    e(f'  v_mov_b32 v{vtmp}, 1')
    e(f'  ds_add_u32 v{areg[0]}, v{vtmp} offset:{areg[1]}')
    e('  s_mov_b64 exec, -1')
def cnt_set(areg, vtmp, val):
    e('  s_mov_b64 exec, 1')
    e(f'  v_mov_b32 v{vtmp}, {val}')
    e(f'  ds_write_b32 v{areg[0]}, v{vtmp} offset:{areg[1]}')
    e('  s_mov_b64 exec, -1')
def cnt_wait(areg, vtmp, val):
    l = newlab('poll'); d = newlab('go')
    e('  s_mov_b32 s100, 0')
    e(f'{l}:')
    e(f'  ds_read_b32 v{vtmp}, v{areg[0]} offset:{areg[1]}')
    e('  s_waitcnt lgkmcnt(0)')
    e(f'  v_readfirstlane_b32 s27, v{vtmp}')
    e(f'  s_cmp_ge_u32 s27, {val}')
    e(f'  s_cbranch_scc1 {d}')
    e('  s_add_u32 s100, s100, 1')
    e(f'  s_cmp_ge_u32 s100, {SPINMAX}')
    e(f'  s_cbranch_scc1 {d}')
    e('  s_sleep 1')
    e(f'  s_branch {l}')
    e(f'{d}:')

K = 'standalone__deep_cross_pnn__recsys_kernel'
hdr = open('standalone__deep_cross_pnn__recsys.s.ref').read().split('\n')
for l in hdr:
    if l.startswith('; @launch'):
        e(f'; @launch grid=(256,1,1) block=(512,1,1) lds={LDS}')
    elif l.startswith(';'):
        e(l)
    else:
        break
e('.amdgcn_target "amdgcn-amd-amdhsa--gfx950"')
e('.text'); e(f'.globl {K}'); e('.p2align 8'); e(f'.type {K},@function'); e(f'{K}:')
e('  s_cmp_ge_u32 s2, 256')
e('  s_cbranch_scc1 L_end')
if PROFILE:
    for k in range(NST): e(f'  s_mov_b64 s[{40+2*k}:{41+2*k}], 0')
stamp(0, rt=True); stamp(1)
e('  s_load_dwordx16 s[72:87], s[0:1], 0')
e('  s_load_dwordx2 s[90:91], s[0:1], 72')
e('  v_lshrrev_b32 v1, 6, v0')
e('  v_and_b32 v0, 63, v0')
e('  v_readfirstlane_b32 s33, v1')
e('  s_and_b32 s34, s2, 7')
e('  s_lshr_b32 s35, s2, 5')
e('  s_lshl_b32 s35, s35, 3')
e('  s_add_u32 s34, s34, s35')
e('  s_lshr_b32 s35, s2, 3')
e('  s_and_b32 s35, s35, 3')
e(f'  v_mov_b32 v255, {CB}')
e('  s_cmp_lg_u32 s33, 0')
e('  s_cbranch_scc1 L_noinit')
e('  v_mov_b32 v2, 0')
e('  v_lshlrev_b32 v3, 2, v0')
e(f'  v_add_u32 v3, {CB}, v3')
e('  s_mov_b64 exec, 0xffff')
e('  ds_write_b32 v3, v2')
e('  s_mov_b64 exec, -1')
e('L_noinit:')
e('  s_waitcnt lgkmcnt(0)')
e('  s_barrier')
def srd(d, p, n):
    e(f'  s_mov_b32 s{d}, s{p}')
    e(f'  s_and_b32 s{d+1}, s{p+1}, 0xffff')
    e(f'  s_mov_b32 s{d+2}, {n}')
    e(f'  s_mov_b32 s{d+3}, 0x20000')
srd(4, 72, 4096*400)
srd(8, 74, 6400000)
e('  s_cmp_ge_u32 s33, 4')
e('  s_cbranch_scc1 L_pnn')
CM = (255, 0); CW = (255, 4); CWD = (255, 8); CGL = (255, 12); CP = (255, 16)
BR = 0; ACC = 200; AF = 208; IDX = 220
VP0, VP1, VT0, VT1, VCH, VA, VT, VL = 228, 229, 230, 231, 232, 233, 234, 250
VB = 236
VM = 240
e(f'  s_setprio {opt("mprio", 2)}')
srd(12, 78, 819200)
srd(16, 80, 256)
srd(20, 82, 256)
e(f'  v_mov_b32 v{VL}, v0')
e('  s_lshl_b32 s24, s34, 2')
e('  s_add_u32 s24, s24, s33')
e('  s_lshl_b32 s24, s24, 7')
e(f'  s_add_u32 s24, s24, {EPO}')
e('  s_add_u32 s92, s90, s24')
e('  s_addc_u32 s93, s91, 0')
e(f'  v_mov_b32 v{VT}, 0')
e(f'  global_load_dword v235, v{VT}, s[92:93] sc1')
e('  s_add_u32 s25, s35, s33')
e('  s_add_u32 s25, s25, 1')
e('  s_and_b32 s25, s25, 3')
e('  s_lshl_b32 s26, s34, 6')
e('  s_lshl_b32 s28, s25, 4')
e('  s_add_u32 s26, s26, s28')
e('  v_lshrrev_b32 v1, 2, v0')
e('  v_and_b32 v2, 3, v0')
e('  v_add_u32 v3, s26, v1')
e('  v_mul_u32_u24 v3, 400, v3')
e('  v_lshl_add_u32 v3, v2, 5, v3')
e('  s_mul_i32 s28, s35, 100')
e(f'  buffer_load_dwordx4 v[{IDX}:{IDX+3}], v3, s[4:7], s28 offen')
e(f'  buffer_load_dwordx4 v[{IDX+4}:{IDX+7}], v3, s[4:7], s28 offen offset:16')
e('  v_and_b32 v4, 15, v0')
e('  v_lshlrev_b32 v5, 1, v4')
e('  s_lshl_b32 s28, s33, 6')
e(f'  buffer_load_ushort v{VB}, v5, s[16:19], s28 offen')
e(f'  buffer_load_ushort v{VB+1}, v5, s[16:19], s28 offen offset:32')
e(f'  buffer_load_ushort v{VB+2}, v5, s[20:23], s28 offen')
e(f'  buffer_load_ushort v{VB+3}, v5, s[20:23], s28 offen offset:32')
e('  v_lshrrev_b32 v6, 4, v0')
e('  v_lshlrev_b32 v7, 1, v6')
e('  v_xor_b32 v7, v7, v4')
e('  v_lshlrev_b32 v8, 8, v6')
e(f'  v_lshl_add_u32 v{VP0}, v7, 4, v8')
e(f'  v_xor_b32 v{VP1}, 128, v{VP0}')
ROT = opt('rot', 1)
e(f'  s_mul_i32 s29, s35, {25*8192}')
def slab_dma(lds_slab, gslab_sreg):
    e(f'  s_mov_b32 m0, {lds_slab*8192}')
    e(f'  s_add_u32 s30, s29, s{gslab_sreg}')
    for half in range(2):
        for u in range(4):
            vp = VP0 if u < 2 else VP1
            e(f'  buffer_load_dwordx4 v{vp}, s[12:15], s30 offen offset:{u*1024} lds')
        if half == 0:
            e('  s_add_u32 m0, m0, 4096')
            e('  s_add_u32 s30, s30, 4096')
e('  s_lshl_b32 s31, s33, 13')
for k in range(3):
    e(f'  s_add_u32 s32, s31, {4*k*8192}')
    e('  s_mov_b32 m0, s32')
    e('  s_add_u32 s30, s29, s32')
    for half in range(2):
        for u in range(4):
            vp = VP0 if u < 2 else VP1
            e(f'  buffer_load_dwordx4 v{vp}, s[12:15], s30 offen offset:{u*1024} lds')
        if half == 0:
            e('  s_add_u32 m0, m0, 4096')
            e('  s_add_u32 s30, s30, 4096')
e('  s_lshl_b32 s32, s33, 11')
e(f'  s_add_u32 s32, s32, {12*8192}')
e('  s_mov_b32 m0, s32')
e('  s_add_u32 s30, s29, s32')
e('  s_bitcmp1_b32 s33, 0')
e(f'  s_cbranch_scc1 L_s12b')
e(f'  buffer_load_dwordx4 v{VP0}, s[12:15], s30 offen lds')
e(f'  buffer_load_dwordx4 v{VP0}, s[12:15], s30 offen offset:1024 lds')
e('  s_branch L_s12c')
e('L_s12b:')
e(f'  buffer_load_dwordx4 v{VP1}, s[12:15], s30 offen lds')
e(f'  buffer_load_dwordx4 v{VP1}, s[12:15], s30 offen offset:1024 lds')
e('L_s12c:')
stamp(2)
e('  v_lshrrev_b32 v7, 2, v4')
e('  v_and_b32 v8, 3, v4')
e('  v_and_b32 v9, 1, v6')
e('  v_lshl_add_u32 v9, v9, 2, v7')
e('  v_lshlrev_b32 v9, 1, v9')
e('  s_lshl_b32 s28, s33, 2')
e('  v_xor_b32 v9, s28, v9')
e('  v_lshrrev_b32 v10, 1, v8')
e('  v_or_b32 v9, v9, v10')
e('  v_lshlrev_b32 v9, 4, v9')
e('  v_and_b32 v10, 1, v8')
e('  v_lshl_add_u32 v9, v10, 3, v9')
e('  v_lshl_add_u32 v10, v6, 3, v7')
e(f'  v_lshl_add_u32 v{VT0}, v10, 8, v9')
e(f'  v_xor_b32 v{VT1}, 32, v{VT0}')
e('  v_lshrrev_b32 v7, 5, v0')
e('  v_lshlrev_b32 v7, 1, v7')
e('  v_xor_b32 v7, v7, v2')
e(f'  v_lshlrev_b32 v{VCH}, 4, v7')
e('  v_lshrrev_b32 v7, 3, v4')
e('  v_lshlrev_b32 v7, 1, v7')
e('  v_xor_b32 v7, v7, v6')
e('  v_lshl_add_u32 v7, v4, 2, v7')
e(f'  v_lshlrev_b32 v{VA}, 4, v7')
e(f'  v_lshlrev_b32 v{VM}, 4, v0')
e('  s_waitcnt vmcnt(30)')
e(f'  v_readfirstlane_b32 s94, v235')
for r in range(8):
    e(f'  v_lshlrev_b32 v{IDX+r}, 6, v{IDX+r}')
e('  s_add_u32 s94, s94, 1')
def gather(slot):
    e(f'  s_mov_b32 m0, {slot}')
    for r in range(25):
        k = r >> 3
        e(f'  v_add_u32_dpp v{VT}, v{IDX+(r&7)}, v{VCH} quad_perm:[{k},{k},{k},{k}] row_mask:0xf bank_mask:0xf')
        e(f'  buffer_load_dwordx4 v{VT}, s[8:11], 0 offen lds')
        if r < 24: e(f'  s_add_u32 m0, m0, {ES}')
stamp(3)
e('  s_cmp_lg_u32 s33, 0')
e('  s_cbranch_scc1 L_nog1')
gather(P0)
e('  s_waitcnt vmcnt(25)')
e('  s_branch L_g1d')
e('L_nog1:')
e('  s_waitcnt vmcnt(0)')
e('L_g1d:')
cnt_inc(CM, VT); cnt_wait(CM, VT, 4)
stamp(4)
def tr_reads(f0, nf, pos0):
    n = 0
    for i in range(nf):
        f = f0 + i; pos = pos0 + i
        if pos % 8 == 0 and pos > 0:
            e(f'  v_add_u32 v{VT0}, 0x10000, v{VT0}')
            e(f'  v_add_u32 v{VT1}, 0x10000, v{VT1}')
        off = (pos % 8) * 8192
        for tt in range(2):
            r = BR + (f*2 + tt)*4
            va = VT0 if tt == 0 else VT1
            e(f'  ds_read_b64_tr_b16 v[{r}:{r+1}], v{va} offset:{off}')
            e(f'  ds_read_b64_tr_b16 v[{r+2}:{r+3}], v{va} offset:{off+1024}')
            n += 2
        if n >= 12:
            e('  s_waitcnt lgkmcnt(4)'); n = 4
    e('  s_waitcnt lgkmcnt(0)')
tr_reads(0, 13, 0)
e(f'  v_subrev_u32 v{VT0}, 0x10000, v{VT0}')
e(f'  v_subrev_u32 v{VT1}, 0x10000, v{VT1}')
cnt_inc(CM, VT); cnt_wait(CM, VT, 8)
stamp(5)
for k in range(3):
    e(f'  s_add_u32 s32, s31, {4*k*8192}')
    e('  s_mov_b32 m0, s32')
    e('  s_add_u32 s30, s29, s32')
    e(f'  s_add_u32 s30, s30, {13*8192}')
    for half in range(2):
        for u in range(4):
            vp = VP0 if u < 2 else VP1
            e(f'  buffer_load_dwordx4 v{vp}, s[12:15], s30 offen offset:{u*1024} lds')
        if half == 0:
            e('  s_add_u32 m0, m0, 4096')
            e('  s_add_u32 s30, s30, 4096')
e('  s_cmp_lg_u32 s33, 1')
e('  s_cbranch_scc1 L_nog2')
cnt_wait(CWD, VT, 4)
gather(P1)
e('  s_waitcnt vmcnt(25)')
e('  s_branch L_g2d')
e('L_nog2:')
e('  s_waitcnt vmcnt(0)')
e('L_g2d:')
cnt_inc(CM, VT); cnt_wait(CM, VT, 12)
stamp(6)
tr_reads(13, 12, 0)
cnt_inc(CM, VT)
stamp(7)
def block(blk):
    slot = P0 if blk % 2 == 0 else P1
    if blk == 1:
        e('  s_cmp_lg_u32 s33, 1')
        e('  s_cbranch_scc1 L_gl2')
        e('  s_waitcnt vmcnt(0)')
        cnt_set(CGL, VT, 2)
        e('L_gl2:')
    if blk >= 1:
        cnt_wait(CGL, VT, blk + 1)
    if blk == 3:
        e('  s_lshl_b32 s24, s34, 2')
        e('  s_add_u32 s24, s24, s35')
        e('  s_lshl_b32 s24, s24, 2')
        e('  s_add_u32 s24, s24, s33')
        e('  s_lshl_b32 s24, s24, 7')
        e(f'  s_add_u32 s24, s24, {FLG}')
        e('  s_add_u32 s96, s90, s24')
        e('  s_addc_u32 s97, s91, 0')
    for r in range(8):
        e(f'  v_mov_b32 v{ACC+r}, 0')
    e(f'  v_add_u32 v235, {slot}, v{VA}')
    NB = 3
    for f in range(2):
        a = AF + (f % NB)*4
        e(f'  ds_read_b128 v[{a}:{a+3}], v235 offset:{f*ES}')
    for f in range(25):
        if f + 2 < 25:
            a = AF + ((f+2) % NB)*4
            e(f'  ds_read_b128 v[{a}:{a+3}], v235 offset:{(f+2)*ES}')
        e(f'  s_waitcnt lgkmcnt({min(2, 24-f)})')
        a = AF + (f % NB)*4
        for tt in range(2):
            b = BR + (f*2+tt)*4
            e(f'  v_mfma_f32_16x16x32_bf16 v[{ACC+4*tt}:{ACC+4*tt+3}], v[{a}:{a+3}], v[{b}:{b+3}], v[{ACC+4*tt}:{ACC+4*tt+3}]')
    if blk < 3:
        e('  s_add_u32 s24, s35, %d' % (blk + 1))
        e('  s_and_b32 s24, s24, 3')
        e('  s_lshl_b32 s25, s34, 2')
        e('  s_add_u32 s24, s24, s25')
        e('  s_lshl_b32 s25, s24, 2')
        e('  s_add_u32 s26, s25, s35')
        e('  s_lshl_b32 s26, s26, 2')
        e('  s_add_u32 s26, s26, s33')
        e('  s_lshl_b32 s26, s26, 11')
        e(f'  s_add_u32 s26, s26, {MSG}')
        e('  s_add_u32 s98, s90, s26')
        e('  s_addc_u32 s99, s91, 0')
        e('  s_add_u32 s25, s25, s33')
        e('  s_lshl_b32 s25, s25, 7')
        e('  s_lshl_b32 s26, s35, 2')
        e('  s_add_u32 s25, s25, s26')
        e(f'  s_add_u32 s25, s25, {FLG}')
        e('  s_add_u32 s96, s90, s25')
        e('  s_addc_u32 s97, s91, 0')
        e(f'  global_store_dwordx4 v{VM}, v[{ACC}:{ACC+3}], s[98:99] sc0 sc1')
        e(f'  global_store_dwordx4 v{VM}, v[{ACC+4}:{ACC+7}], s[98:99] offset:1024 sc0 sc1')
        cnt_inc(CP, VT)
        e('  s_waitcnt vmcnt(0)')
        e('  s_mov_b64 exec, 1')
        e(f'  v_mov_b32 v{VT}, 0')
        e('  v_mov_b32 v235, s94')
        e(f'  global_store_dword v{VT}, v235, s[96:97] sc0 sc1')
        e('  s_mov_b64 exec, -1')
        if blk == 1:
            e('  s_cmp_lg_u32 s33, 2'); e('  s_cbranch_scc1 L_gl3'); cnt_set(CGL, VT, 3); e('L_gl3:')
        if blk == 2:
            e('  s_cmp_lg_u32 s33, 3'); e('  s_cbranch_scc1 L_gl4'); cnt_set(CGL, VT, 4); e('L_gl4:')
        if blk < 2:
            e(f'  s_cmp_lg_u32 s33, {blk+2}')
            e(f'  s_cbranch_scc1 L_nog{blk+3}')
            cnt_wait(CP, VT, 4*(blk+1))
            gather(slot)
            e(f'L_nog{blk+3}:')
        stamp(8 + blk)
for blk in range(4):
    block(blk)
stamp(11)
e(f'  v_mov_b32 v{VT}, 0')
e('  s_mov_b32 s25, 0')
e('L_fpoll:')
e(f'  global_load_dwordx4 v[24:27], v{VT}, s[96:97] sc0 sc1')
e('  s_waitcnt vmcnt(0)')
e('  s_mov_b32 s26, 0')
for i in range(4):
    e(f'  v_readfirstlane_b32 s27, v{24+i}')
    e('  s_cmp_eq_u32 s27, s94')
    e('  s_addc_u32 s26, s26, 0')
e('  s_cmp_ge_u32 s26, 3')
e('  s_cbranch_scc1 L_fgo')
e('  s_add_u32 s25, s25, 1')
e(f'  s_cmp_lt_u32 s25, {SPINMAX}')
e('  s_cbranch_scc0 L_fgo')
e('  s_sleep 2')
e('  s_branch L_fpoll')
e('L_fgo:')
for k in range(3):
    e(f'  s_add_u32 s24, s35, {k+1}')
    e('  s_and_b32 s24, s24, 3')
    e('  s_lshl_b32 s25, s34, 2')
    e('  s_add_u32 s25, s25, s35')
    e('  s_lshl_b32 s25, s25, 2')
    e('  s_add_u32 s25, s25, s24')
    e('  s_lshl_b32 s25, s25, 2')
    e('  s_add_u32 s25, s25, s33')
    e('  s_lshl_b32 s25, s25, 11')
    e(f'  s_add_u32 s25, s25, {MSG}')
    e('  s_add_u32 s98, s90, s25')
    e('  s_addc_u32 s99, s91, 0')
    e(f'  global_load_dwordx4 v[{k*8}:{k*8+3}], v{VM}, s[98:99] sc0 sc1')
    e(f'  global_load_dwordx4 v[{k*8+4}:{k*8+7}], v{VM}, s[98:99] offset:1024 sc0 sc1')
e('  s_cmp_lg_u32 s35, 0')
e('  s_cbranch_scc1 L_noepo')
e('  s_mov_b64 exec, 1')
e('  v_mov_b32 v235, s94')
e(f'  global_store_dword v{VT}, v235, s[92:93] sc0 sc1')
e('  s_mov_b64 exec, -1')
e('L_noepo:')
for r in range(4):
    e(f'  v_lshlrev_b32 v{VB+r}, 16, v{VB+r}')
e('  s_mov_b32 s36, 0xc0135761')
e('  s_mov_b32 s37, 0xbdd2d3e8')
e('  v_mov_b32 v40, s36')
e('  s_waitcnt vmcnt(1)')
e('  s_cmp_eq_u32 s35, 0')
e('  s_cbranch_scc1 L_pl')
e('  s_waitcnt vmcnt(0)')
e('L_pl:')
stamp(12)
for r in range(8):
    e(f'  v_add_f32 v{r}, v{r}, v{8+r}')
    e(f'  v_add_f32 v{ACC+r}, v{ACC+r}, v{16+r}')
for r in range(8):
    e(f'  v_add_f32 v{r}, v{r}, v{ACC+r}')
for r in range(8):
    e(f'  v_add_f32 v{r}, v{r}, v{VB+(r>>2)}')
for r in range(8): e(f'  v_mul_f32 v{8+r}, v{r}, v{r}')
for r in range(8): e(f'  v_fma_f32 v{8+r}, v{8+r}, s37, v40')
for r in range(8): e(f'  v_mul_f32 v{8+r}, v{8+r}, v{r}')
for r in range(8): e(f'  v_exp_f32 v{8+r}, v{8+r}')
for r in range(8): e(f'  v_add_f32 v{8+r}, 1.0, v{8+r}')
for r in range(8): e(f'  v_rcp_f32 v{8+r}, v{8+r}')
for r in range(8): e(f'  v_mul_f32 v{8+r}, v{8+r}, v{r}')
for r in range(4): e(f'  v_mul_f32 v{16+r}, v{8+r}, v{VB+2}')
for r in range(4): e(f'  v_fmac_f32 v{16+r}, v{12+r}, v{VB+3}')
for sh in ['row_shr:1', 'row_shr:2', 'row_shr:4', 'row_shr:8']:
    for r in range(4):
        e(f'  v_add_f32_dpp v{16+r}, v{16+r}, v{16+r} {sh} row_mask:0xf bank_mask:0xf')
e(f'  v_lshrrev_b32 v21, 4, v{VL}')
e('  v_lshlrev_b32 v21, 4, v21')
e('  s_lshl_b32 s24, s33, 6')
e(f'  s_add_u32 s24, s24, {RB}')
e('  v_add_u32 v21, s24, v21')
e('  s_mov_b32 exec_lo, 0x80008000')
e('  s_mov_b32 exec_hi, 0x80008000')
e('  ds_write_b128 v21, v[16:19]')
e('  s_mov_b64 exec, -1')
e('  s_waitcnt lgkmcnt(0)')
e('  s_barrier')
stamp(13)
stamp(NST-1, rt=True)
stamp_store()
e('  s_endpgm')
e('L_pnn:')
e('  s_sub_u32 s95, s33, 4')
e(f'  s_setprio {opt("pprio", 3)}')
srd(12, 76, 20000)
srd(28, 86, 8192)
e('  s_load_dword s39, s[84:85], 0')
VLN, VWA, VCH2 = 190, 191, 177
IX = 152
SEL = 178
TF = 112
e(f'  v_mov_b32 v{VLN}, v0')
e('  s_lshl_b32 s24, s34, 6')
e('  s_lshl_b32 s25, s35, 4')
e('  s_add_u32 s24, s24, s25')
e('  s_lshl_b32 s25, s95, 2')
e('  s_add_u32 s24, s24, s25')
e('  s_mul_i32 s24, s24, 400')
e('  v_lshlrev_b32 v1, 4, v0')
e('  s_mul_i32 s25, s95, 1600')
e(f'  s_add_u32 s25, s25, {IB}')
e('  s_mov_b32 m0, s25')
e('  s_nop 0')
e('  buffer_load_dwordx4 v1, s[4:7], s24 offen lds')
e('  s_mov_b32 exec_hi, 0xf')
e('  buffer_load_dwordx4 v1, s[4:7], s24 offen offset:1024 lds')
e('  s_mov_b64 exec, -1')
e('  s_lshl_b32 s38, s95, 10')
e(f'  s_add_u32 s26, s38, {WB}')
for k in range(6):
    if k == 5:
        e('  s_cmp_ge_u32 s95, 2')
        e('  s_cbranch_scc1 L_w5')
    e(f'  s_mov_b32 m0, s26')
    e(f'  s_add_u32 s26, s26, 4096')
    e(f'  buffer_load_dwordx4 v1, s[12:15], s38 offen lds')
    e(f'  s_add_u32 s38, s38, 4096')
e('L_w5:')
e('  v_and_b32 v7, 15, v0')
e('  v_lshrrev_b32 v8, 4, v0')
e('  v_lshlrev_b32 v9, 3, v8')
e('  v_sub_u32 v9, v7, v9')
e('  v_and_b32 v10, 1, v9')
e('  v_lshlrev_b32 v10, 4, v10')
e('  s_mov_b32 s26, 0x3f80')
e('  v_lshlrev_b32 v10, v10, s26')
e('  v_ashrrev_i32 v11, 1, v9')
e('  v_add_u32 v12, 8, v11')
e('  v_cmp_gt_u32 s[36:37], 4, v7')
for m in range(4):
    e(f'  v_cmp_eq_u32 vcc, {m}, v11')
    e('  s_nop 1')
    e(f'  v_cndmask_b32 v{SEL+m}, 0, v10, vcc')
    e(f'  v_cmp_eq_u32 vcc, {m}, v12')
    e('  s_nop 1')
    e(f'  v_cndmask_b32 v{SEL+4+m}, 0, v10, vcc')
for m in range(4):
    e(f'  v_cndmask_b32 v{SEL+8+m}, 0, v{SEL+m}, s[36:37]')
e('  v_mul_u32_u24 v13, 200, v7')
e('  v_lshl_add_u32 v13, v8, 4, v13')
e(f'  v_add_u32 v{VWA}, {WB}, v13')
e('  v_lshrrev_b32 v14, 2, v0')
e('  v_and_b32 v14, 3, v14')
e('  v_xor_b32 v14, v14, v8')
e('  v_and_b32 v15, 3, v0')
e(f'  v_lshlrev_b32 v{VCH2}, 4, v15')
e('  v_mul_u32_u24 v14, 400, v14')
e('  v_lshl_add_u32 v14, v8, 2, v14')
e('  v_add_u32 v14, s25, v14')
stamp(2)
e('  s_waitcnt vmcnt(0)')
for t in range(25):
    e(f'  ds_read_b32 v{IX+t}, v14 offset:{16*t}')
    if t == 12: e('  s_waitcnt lgkmcnt(0)')
cnt_inc(CW, 16)
e('  s_waitcnt lgkmcnt(0)')
for t in range(25):
    e(f'  v_lshl_add_u32 v{IX+t}, v{IX+t}, 6, v{VCH2}')
stamp(3)
cnt_wait(CW, 16, 4)
stamp(4)
tiles = [(I, J) for J in range(7) for I in range(J+1)]
tidx = {t: n for n, t in enumerate(tiles)}
def SELR(X):
    b = SEL + 8 if X == 6 else (SEL if X % 2 == 0 else SEL + 4)
    return f'v[{b}:{b+3}]'
for J in range(7):
    need = [(I, J >> 1) for I in range(J+1)] + sorted(set((J, I >> 1) for I in range(J)) - set([(J, J >> 1)]))
    reg = {}
    nrd = 0
    for n, (X, kb) in enumerate(need):
        r = TF + n*4
        assert r + 3 < IX
        reg[(X, kb)] = r
        off = X*3200 + kb*64
        e(f'  ds_read_b64 v[{r}:{r+1}], v{VWA} offset:{off}')
        e(f'  ds_read_b64 v[{r+2}:{r+3}], v{VWA} offset:{off+8}')
        nrd += 2
        if nrd >= 14: e('  s_waitcnt lgkmcnt(6)'); nrd = 6
    e('  s_waitcnt lgkmcnt(0)')
    for I in range(J+1):
        n = tidx[(I, J)]
        d = f'v[{n*4}:{n*4+3}]'
        ra = reg[(I, J >> 1)]
        e(f'  v_mfma_f32_16x16x32_bf16 {d}, v[{ra}:{ra+3}], {SELR(J)}, 0')
        if I != J:
            rb = reg[(J, I >> 1)]
            e(f'  v_mfma_f32_16x16x32_bf16 {d}, {SELR(I)}, v[{rb}:{rb+3}], {d}')
cnt_inc(CWD, 112)
stamp(5)
e(f'  s_setprio {opt("pprio2", 0)}')
cnt_wait(CM, 112, 16)
stamp(6)
e(f'  s_mul_i32 s24, s95, {PSZ}')
e(f'  s_add_u32 s24, s24, {EO}')
e('  s_mov_b32 m0, s24')
e('  s_nop 0')
for t in range(25):
    e(f'  buffer_load_dwordx4 v{IX+t}, s[8:11], 0 offen lds')
    if t < 24:
        e(f'  s_add_u32 m0, m0, {ES}')
        e('  s_nop 0')
stamp(7)
EA = 152
e(f'  v_and_b32 v112, 15, v{VLN}')
e(f'  v_lshrrev_b32 v113, 4, v{VLN}')
e('  v_lshrrev_b32 v114, 2, v112')
e('  v_and_b32 v115, 3, v112')
e(f'  v_lshlrev_b32 v116, 8, v115')
e('  v_lshl_add_u32 v116, v113, 4, v116')
e('  v_add_u32 v116, s24, v116')
e(f'  v_mul_u32_u24 v117, {ES}, v114')
for sg in range(4):
    e(f'  v_xor_b32 v118, {sg}, v115')
    e(f'  v_lshl_add_u32 v{EA+4+sg}, v118, 6, v116')
    e(f'  v_add_u32 v{EA+sg}, v{EA+4+sg}, v117')
EF = 112
EF2 = 160
DB = 140
AC = 192
for r in range(16): e(f'  v_mov_b32 v{AC+r}, 0')
seq = [(J, sg) for J in range(7) for sg in range(4)]
def reads(k):
    J, sg = seq[k]
    base = EF if k % 2 == 0 else EF2
    for I in range(J+1):
        if I < 6:
            e(f'  ds_read_b128 v[{base+4*I}:{base+4*I+3}], v{EA+sg} offset:{I*4*ES}')
        else:
            e(f'  ds_read_b128 v[{base+4*I}:{base+4*I+3}], v{EA+4+sg} offset:{24*ES}')
pend = []
mcount = [0]
def flush(keep):
    while len(pend) > keep:
        d, n, sg = pend.pop(0)
        for r in range(4):
            e(f'  v_fmac_f32 v{AC+4*sg+r}, v{d+r}, v{n*4+r}')
def vmw(J):
    last_t = min(4*J + 3, 24)
    e(f'  s_waitcnt vmcnt({24 - last_t})')
vmw(0)
reads(0)
for k, (J, sg) in enumerate(seq):
    base = EF if k % 2 == 0 else EF2
    nxt = k + 1 < len(seq)
    if nxt:
        if seq[k+1][0] != J: vmw(seq[k+1][0])
        reads(k+1)
        nn = seq[k+1][0] + 1
        e(f'  s_waitcnt lgkmcnt({min(nn, 15)})')
    else:
        e('  s_waitcnt lgkmcnt(0)')
    for I in range(J+1):
        d = DB + (mcount[0] % 3) * 4
        mcount[0] += 1
        e(f'  v_mfma_f32_16x16x32_bf16 v[{d}:{d+3}], v[{base+4*I}:{base+4*I+3}], v[{base+4*J}:{base+4*J+3}], 0')
        pend.append((d, tidx[(I, J)], sg))
        if mcount[0] == 3: e('  s_nop 5')
        flush(2)
e('  s_nop 5')
flush(0)
stamp(8)
RES = 208
for sg in range(4):
    e(f'  v_add_f32 v{AC+4*sg}, v{AC+4*sg}, v{AC+4*sg+1}')
    e(f'  v_add_f32 v{AC+4*sg+2}, v{AC+4*sg+2}, v{AC+4*sg+3}')
for sg in range(4):
    e(f'  v_add_f32 v{RES+sg}, v{AC+4*sg}, v{AC+4*sg+2}')
e('  s_nop 1')
for sh in ['row_shr:1', 'row_shr:2', 'row_shr:4', 'row_shr:8']:
    for r in range(4):
        e(f'  v_add_f32_dpp v{RES+r}, v{RES+r}, v{RES+r} {sh} row_mask:0xf bank_mask:0xf')
for r in range(4):
    e(f'  v_add_f32_dpp v{RES+r}, v{RES+r}, v{RES+r} row_bcast:15 row_mask:0xa bank_mask:0xf')
for r in range(4):
    e(f'  v_add_f32_dpp v{RES+r}, v{RES+r}, v{RES+r} row_bcast:31 row_mask:0xc bank_mask:0xf')
e('  s_lshl_b32 s39, s39, 16')
e('  s_lshl_b32 s24, s95, 4')
e(f'  s_add_u32 s24, s24, {RB}')
e('  v_mov_b32 v212, s24')
e('  s_lshl_b32 s36, s34, 6')
e('  s_lshl_b32 s37, s35, 4')
e('  s_add_u32 s36, s36, s37')
e('  s_lshl_b32 s37, s95, 2')
e('  s_add_u32 s36, s36, s37')
e('  s_lshl_b32 s36, s36, 1')
e('  v_mov_b32 v42, s36')
stamp(9)
e('  s_barrier')
stamp(10)
for w in range(4):
    e(f'  ds_read_b128 v[{216+4*w}:{219+4*w}], v212 offset:{w*64}')
e('  s_waitcnt lgkmcnt(0)')
for r in range(4):
    e(f'  v_add_f32 v{216+r}, v{216+r}, v{220+r}')
    e(f'  v_add_f32 v{224+r}, v{224+r}, v{228+r}')
for r in range(4):
    e(f'  v_add_f32 v{216+r}, v{216+r}, v{224+r}')
for r in range(4):
    e(f'  v_add_f32 v{RES+r}, v{RES+r}, v{216+r}')
for r in range(4):
    e(f'  v_add_f32 v{RES+r}, s39, v{RES+r}')
e(f'  v_cvt_pk_bf16_f32 v40, v{RES}, v{RES+1}')
e(f'  v_cvt_pk_bf16_f32 v41, v{RES+2}, v{RES+3}')
e('  s_mov_b32 exec_lo, 0')
e('  s_mov_b32 exec_hi, 0x80000000')
e('  buffer_store_dwordx2 v[40:41], v42, s[28:31], 0 offen')
stamp(11)
stamp(NST-1, rt=True)
stamp_store()
e('L_end:')
e('  s_endpgm')
e('.section .rodata,"a"'); e('.p2align 6'); e(f'.amdhsa_kernel {K}')
for l in ['.amdhsa_next_free_vgpr 256', '.amdhsa_next_free_sgpr 102', '.amdhsa_accum_offset 256', '.amdhsa_group_segment_fixed_size 0', '.amdhsa_kernarg_size 80', '.amdhsa_user_sgpr_count 2', '.amdhsa_user_sgpr_kernarg_segment_ptr 1', '.amdhsa_system_sgpr_workgroup_id_x 1']: e('  ' + l)
e('.end_amdhsa_kernel')
open(sys.argv[1], 'w').write('\n'.join(x for x in L if x is not None) + '\n')
print('LDS', LDS)
```
